```python
import torch

def _softmax(x, axis=-1):
    return torch.softmax(x, dim=axis)

def _gelu(x):
    return torch.nn.functional.gelu(x, approximate='tanh')

def _silu(x):
    return torch.nn.functional.silu(x)

def _sigmoid(x):
    return torch.sigmoid(x)

def _layernorm(x, axis=-1, eps=1e-05):
    m = x.mean(dim=axis, keepdim=True)
    v = x.var(dim=axis, keepdim=True, unbiased=False)
    return (x - m) / torch.sqrt(v + eps)

def _scatter_add(tgt, idx, src, axis=0):
    return tgt.clone().index_add_(axis, idx, src)

def _segment_sum(src, seg, n):
    out = torch.zeros((n,) + src.shape[1:], dtype=src.dtype)
    return out.index_add_(0, seg, src)

def _pad(x, pw):
    flat = tuple((v for pair in reversed(pw) for v in pair))
    return torch.nn.functional.pad(x, flat)
kernel_name = 'adaLN_cond__mha_block_cached__geglu_ffn__decode'

def setup_inputs():

    _w = lambda a: (lambda t: t.to(torch.bfloat16) if t.is_floating_point() else t)(torch.as_tensor(a))

    def _A_setup():
        B, Sq, D = (2, 1, 448)
        H, Sk, Dh = (16, 4096, 256)
        return {'x': _w((lambda *s: torch.randn(*s, dtype=torch.bfloat16) * 0.1)(B, Sq, D)), 'k_cache': _w((lambda *s: torch.randn(*s, dtype=torch.bfloat16) * 0.8)(B, H, Sk, Dh)), 'v_cache': _w((lambda *s: torch.randn(*s, dtype=torch.bfloat16) * 0.8)(B, H, Sk, Dh)), 'wq': _w((lambda *s: torch.randn(*s, dtype=torch.bfloat16) * 0.8)(D, H * Dh) * D ** (-0.5)), 'wo': _w((lambda *s: torch.randn(*s, dtype=torch.bfloat16) * 0.8)(H * Dh, D) * (H * Dh) ** (-0.5))}
    _A_in = _A_setup()

    def _B_setup():
        B, S, D, F = (2, 1, 448, 1792)
        return {'x': _w((lambda *s: torch.randn(*s, dtype=torch.bfloat16) * 0.1)(B, S, D)), 'w_gate': _w((lambda *s: torch.randn(*s, dtype=torch.bfloat16) * 0.1)(D, F)), 'w_up': _w((lambda *s: torch.randn(*s, dtype=torch.bfloat16) * 0.1)(D, F)), 'w_down': _w((lambda *s: torch.randn(*s, dtype=torch.bfloat16) * 0.1)(F, D))}
    _B_in = _B_setup()
    return {'A_x': _A_in['x'], 'A_k_cache': _A_in['k_cache'], 'A_v_cache': _A_in['v_cache'], 'A_wq': _A_in['wq'], 'A_wo': _A_in['wo'], 'B_x': _B_in['x'], 'B_w_gate': _B_in['w_gate'], 'B_w_up': _B_in['w_up'], 'B_w_down': _B_in['w_down'], 'c': _w((lambda *s: torch.randn(*s, dtype=torch.bfloat16) * 0.8)(2, 448) * 8.0), 'w_mod': _w((lambda *s: torch.randn(*s, dtype=torch.bfloat16) * 0.8)(448, 6 * 448) * 448 ** (-0.5) * 8.0)}

def reference(A_x, A_k_cache, A_v_cache, A_wq, A_wo, B_x, B_w_gate, B_w_up, B_w_down, c, w_mod):

    def _A_ref(x, k_cache, v_cache, wq, wo):
        B, Sq, D = x.shape
        H, Dh = (16, 256)
        q = (lambda x, *d: x.permute(*d))((x @ wq).reshape(B, Sq, H, Dh), 0, 2, 1, 3)
        scores = torch.einsum('bhqd,bhkd->bhqk', q, k_cache) * Dh ** (-0.5)
        p = _softmax(scores, axis=-1)
        o = torch.einsum('bhqk,bhkd->bhqd', p, v_cache)
        return (lambda x, *d: x.permute(*d))(o, 0, 2, 1, 3).reshape(B, Sq, H * Dh) @ wo

    def _B_ref(x, w_gate, w_up, w_down):
        return _gelu(x @ w_gate) * (x @ w_up) @ w_down
    x = A_x
    mod = (_silu(c) @ w_mod).reshape(c.shape[0], 6, 1, -1)
    sa, ca, ga, sb, cb, gb = (mod[:, 0].clone(), mod[:, 1].clone(), mod[:, 2].clone(), mod[:, 3].clone(), mod[:, 4].clone(), mod[:, 5].clone())
    h = _layernorm(x, axis=-1) * (1 + ca) + sa
    x = x + ga * _A_ref(h, A_k_cache, A_v_cache, A_wq, A_wo)
    h = _layernorm(x, axis=-1) * (1 + cb) + sb
    x = x + gb * _B_ref(h, B_w_gate, B_w_up, B_w_down)
    return x
```

```python
class Asm:
    def __init__(self):
        self.lines = []
        self._lab = 0
    def __call__(self, s):
        for l in s.strip("\n").split("\n"):
            l = l.strip()
            if not l:
                continue
            if l.endswith(":") and " " not in l:
                self.lines.append(l)
            else:
                self.lines.append("    " + l)
    def label(self, base="L"):
        self._lab += 1
        return f"{base}_{self._lab}"
    def text(self):
        return "\n".join(self.lines) + "\n"

def vr(a, n):
    return f"v[{a}:{a+n-1}]"
def sr(a, n):
    return f"s[{a}:{a+n-1}]"
```

```python
import sys
from asmlib import *

NAME = "adaLN_cond__mha_block_cached__geglu_ffn__decode"
LOG2E = "0x3fb8aa3b"

WS_MOD  = 0x00000
WS_Q    = 0x08000
WS_PART = 0x10000
WS_ML   = 0x50000
WS_ATT  = 0x60000
WS_ACT  = 0x80000

def prologue(a, nwg):
    a(f"""
    s_cmp_ge_u32 s2, {nwg}
    s_cbranch_scc1 L_exit_{a.kname}
    s_load_dwordx16 s[16:31], s[0:1], 0
    s_load_dwordx8 s[32:39], s[0:1], 64
    s_load_dwordx4 s[40:43], s[0:1], 96
    """)

def srd(a, s, ptr, size):
    a(f"""
    s_mov_b32 s{s}, s{ptr}
    s_and_b32 s{s+1}, s{ptr+1}, 0xffff
    s_mov_b32 s{s+2}, {size}
    s_mov_b32 s{s+3}, 0x00020000
    """)

def rnd_bf16(a, v, t):
    a(f"""
    v_cvt_pk_bf16_f32 v{t}, v{v}, v{v}
    v_lshlrev_b32 v{v}, 16, v{t}
    """)

def wave_allsum(a, v, t):
    a(f"""
    s_nop 1
    v_add_f32_dpp v{v}, v{v}, v{v} quad_perm:[1,0,3,2] row_mask:0xf bank_mask:0xf
    s_nop 1
    v_add_f32_dpp v{v}, v{v}, v{v} quad_perm:[2,3,0,1] row_mask:0xf bank_mask:0xf
    s_nop 1
    v_add_f32_dpp v{v}, v{v}, v{v} row_half_mirror row_mask:0xf bank_mask:0xf
    s_nop 1
    v_add_f32_dpp v{v}, v{v}, v{v} row_mirror row_mask:0xf bank_mask:0xf
    v_mov_b32 v{t}, v{v}
    s_nop 1
    v_permlane16_swap_b32 v{v}, v{t}
    v_add_f32 v{v}, v{v}, v{t}
    v_mov_b32 v{t}, v{v}
    s_nop 1
    v_permlane32_swap_b32 v{v}, v{t}
    v_add_f32 v{v}, v{v}, v{t}
    """)

def fma_tile(a, w, acc, av0, av1, t):
    for d in range(4):
        a(f"""
        v_lshlrev_b32 v{t}, 16, v{w+d}
        v_and_b32 v{t+1}, 0xffff0000, v{w+d}
        v_fmac_f32 v{acc+2*d}, v{av0}, v{t}
        v_fmac_f32 v{acc+2*d+1}, v{av0}, v{t+1}
        v_fmac_f32 v{acc+8+2*d}, v{av1}, v{t}
        v_fmac_f32 v{acc+8+2*d+1}, v{av1}, v{t+1}
        """)

def swap_reduce16(a, acc):
    a("s_nop 1")
    for i in range(8):
        a(f"v_permlane32_swap_b32 v{acc+i}, v{acc+i+8}")
    for i in range(8):
        a(f"v_add_f32 v{acc+i}, v{acc+i}, v{acc+i+8}")
    a("s_nop 1")
    for i in range(4):
        a(f"v_permlane16_swap_b32 v{acc+i}, v{acc+i+4}")
    for i in range(4):
        a(f"v_add_f32 v{acc+i}, v{acc+i}, v{acc+i+4}")

def zero(a, r, n):
    for i in range(n):
        a(f"v_mov_b32 v{r+i}, 0")

def ln_phase(a, xsrc_regs, modoff_shift, modoff_scale, lds_base, tmp):
    xs = xsrc_regs
    T = tmp + 14
    a(f"v_add_f32 v{T}, v{xs}, v{xs+1}")
    for i in range(2, 7):
        a(f"v_add_f32 v{T}, v{T}, v{xs+i}")
    wave_allsum(a, T, T+1)
    a(f"v_mul_f32 v{T}, 0x3b124925, v{T}")
    a(f"v_sub_f32 v{T+2}, v{xs}, v{T}")
    a(f"v_mul_f32 v{T+3}, v{T+2}, v{T+2}")
    for i in range(1, 7):
        a(f"v_sub_f32 v{T+2}, v{xs+i}, v{T}")
        a(f"v_fmac_f32 v{T+3}, v{T+2}, v{T+2}")
    wave_allsum(a, T+3, T+1)
    a(f"v_mul_f32 v{T+3}, 0x3b124925, v{T+3}")
    rnd_bf16(a, T, T+1)
    rnd_bf16(a, T+3, T+1)
    a(f"v_add_f32 v{T+3}, 0x3727c5ac, v{T+3}")
    rnd_bf16(a, T+3, T+1)
    a(f"v_sqrt_f32 v{T+3}, v{T+3}")
    a("s_nop 0")
    rnd_bf16(a, T+3, T+1)
    a(f"v_rcp_f32 v{T+4}, v{T+3}")
    a("s_nop 0")
    for i in range(7):
        d = T+2
        a(f"v_sub_f32 v{d}, v{xs+i}, v{T}")
        rnd_bf16(a, d, T+1)
        a(f"v_mul_f32 v{T+5}, v{d}, v{T+4}")
        a(f"v_fma_f32 v{T+6}, -v{T+5}, v{T+3}, v{d}")
        a(f"v_fmac_f32 v{T+5}, v{T+6}, v{T+4}")
        rnd_bf16(a, T+5, T+1)
        a(f"v_add_f32 v{T+6}, 1.0, v{tmp+7+i}")
        rnd_bf16(a, T+6, T+1)
        a(f"v_mul_f32 v{T+5}, v{T+5}, v{T+6}")
        rnd_bf16(a, T+5, T+1)
        a(f"v_add_f32 v{T+5}, v{T+5}, v{tmp+i}")
        rnd_bf16(a, T+5, T+1)
        a(f"ds_write_b32 v{T+7}, v{T+5} offset:{lds_base + i*512}")

def k_mod(a):
    prologue(a, 42)
    a("""
    v_and_b32 v1, 7, v0
    v_lshrrev_b32 v2, 3, v0
    v_mul_u32_u24 v3, 5376, v2
    v_lshl_add_u32 v3, v1, 4, v3
    s_lshl_b32 s56, s2, 7
    s_add_u32 s57, s56, 688128
    s_add_u32 s58, s57, 688128
    s_add_u32 s59, s58, 688128
    s_waitcnt lgkmcnt(0)
    """)
    srd(a, 44, 36, 448*5376)
    a("""
    buffer_load_dwordx4 v[8:11], v3, s[44:47], s56 offen
    buffer_load_dwordx4 v[12:15], v3, s[44:47], s57 offen
    buffer_load_dwordx4 v[16:19], v3, s[44:47], s58 offen
    buffer_load_dwordx4 v[20:23], v3, s[44:47], s59 offen
    ; silu(c)
    v_mov_b32 v5, 0
    v_lshlrev_b32 v6, 2, v0
    v_cmp_gt_u32 vcc, 896, v0
    s_and_saveexec_b64 s[60:61], vcc
    s_cbranch_execz L_mod_noc
    v_lshlrev_b32 v4, 1, v0
    global_load_ushort v5, v4, s[34:35]
    v_cmp_le_u32 vcc, 448, v0
    v_cndmask_b32 v6, 0, 1, vcc      ; b
    v_mul_u32_u24 v7, 448, v6
    v_sub_u32 v7, v0, v7             ; k
    v_lshl_add_u32 v6, v7, 1, v6     ; k*2+b
    v_lshlrev_b32 v6, 2, v6
    s_waitcnt vmcnt(0)
    v_lshlrev_b32 v5, 16, v5
    v_mul_f32 v7, 0xbfb8aa3b, v5
    v_exp_f32 v7, v7
    s_nop 0
    v_add_f32 v7, 1.0, v7
    v_rcp_f32 v7, v7
    s_nop 0
    v_mul_f32 v5, v5, v7
    """)
    rnd_bf16(a, 5, 7)
    a("""
L_mod_noc:
    s_or_b64 exec, exec, s[60:61]
    ds_write_b32 v6, v5
    s_waitcnt lgkmcnt(0)
    s_barrier
    v_lshlrev_b32 v4, 3, v2
    ds_read_b64 v[24:25], v4
    ds_read_b64 v[26:27], v4 offset:1024
    ds_read_b64 v[28:29], v4 offset:2048
    ds_read_b64 v[30:31], v4 offset:3072
    """)
    zero(a, 32, 16)
    a("s_waitcnt vmcnt(0) lgkmcnt(0)")
    for i in range(4):
        fma_tile(a, 8+4*i, 32, 24+2*i, 25+2*i, 48)
    a("s_nop 1")
    for i in range(16):
        a(f"v_add_f32_dpp v{32+i}, v{32+i}, v{32+i} row_ror:8 row_mask:0xf bank_mask:0xf")
    swap_reduce16(a, 32)
    a("""
    v_lshrrev_b32 v4, 6, v0
    v_lshlrev_b32 v4, 9, v4
    v_lshl_add_u32 v4, v1, 6, v4
    v_bfe_u32 v5, v0, 4, 2
    v_lshl_add_u32 v4, v5, 4, v4
    ds_write_b128 v4, v[32:35] offset:4096
    s_waitcnt lgkmcnt(0)
    s_barrier
    v_cmp_gt_u32 vcc, 128, v0
    s_and_saveexec_b64 s[60:61], vcc
    s_cbranch_execz L_mod_end
    v_lshlrev_b32 v4, 2, v0
    """)
    for w in range(16):
        a(f"ds_read_b32 v{8+w}, v4 offset:{4096+w*512}")
    a("s_waitcnt lgkmcnt(0)")
    for w in range(1, 16):
        a(f"v_add_f32 v8, v8, v{8+w}")
    rnd_bf16(a, 8, 9)
    a(f"""
    v_lshrrev_b32 v4, 4, v0
    v_lshlrev_b32 v4, 3, v4
    v_and_b32 v5, 7, v0
    v_add_u32 v4, v4, v5
    v_bfe_u32 v5, v0, 3, 1
    v_mul_u32_u24 v5, 2688, v5
    v_add_u32 v4, v4, v5
    v_lshlrev_b32 v4, 2, v4
    s_lshl_b32 s56, s2, 8
    v_add_u32 v4, s56, v4
    global_store_dword v4, v8, s[42:43] offset:{WS_MOD}
L_mod_end:
    s_or_b64 exec, exec, s[60:61]
    """)

def load_x_mod(a, shift_idx, scale_idx):
    a(f"""
    s_mul_i32 s61, s60, 896
    v_lshl_add_u32 v2, v1, 1, s61
    s_mul_i32 s61, s60, {2688*4}
    v_lshl_add_u32 v3, v1, 2, s61
    """)
    for i in range(7):
        a(f"global_load_ushort v{8+i}, v2, s[16:17] offset:{i*128}")
    a(f"v_add_u32 v4, {WS_MOD + shift_idx*448*4}, v3")
    a(f"v_add_u32 v3, {WS_MOD + scale_idx*448*4}, v3")
    for i in range(7):
        a(f"global_load_dword v{16+i}, v4, s[42:43] offset:{i*256}")
    for i in range(7):
        a(f"global_load_dword v{23+i}, v3, s[42:43] offset:{i*256}")

def k_q(a):
    prologue(a, 256)
    a("""
    s_lshr_b32 s56, s2, 4       ; head
    s_and_b32 s57, s2, 15       ; i
    s_lshl_b32 s58, s56, 9
    s_lshl_b32 s59, s57, 5
    s_add_u32 s58, s58, s59
    v_lshrrev_b32 v4, 1, v0     ; row
    v_and_b32 v5, 1, v0         ; cg
    v_lshlrev_b32 v6, 13, v4
    v_lshl_add_u32 v6, v5, 4, v6
    v_and_b32 v1, 63, v0
    v_lshrrev_b32 v7, 6, v0
    s_nop 0
    v_readfirstlane_b32 s60, v7
    s_waitcnt lgkmcnt(0)
    """)
    srd(a, 44, 22, 448*8192)
    a("""
    buffer_load_dwordx4 v[40:43], v6, s[44:47], s58 offen
    s_cmp_ge_u32 s60, 2
    s_cbranch_scc1 L_q_skipln
    """)
    load_x_mod(a, 0, 1)
    a("s_waitcnt vmcnt(0)")
    for i in range(7):
        a(f"v_lshlrev_b32 v{8+i}, 16, v{8+i}")
    a(f"""
    v_lshlrev_b32 v{16+14+7}, 3, v1
    s_lshl_b32 s61, s60, 2
    v_add_u32 v{16+14+7}, s61, v{16+14+7}
    """)
    ln_phase(a, 8, 0, 1, 0, 16)
    a(f"""
L_q_skipln:
    s_waitcnt lgkmcnt(0)
    s_barrier
    v_lshrrev_b32 v4, 1, v0
    v_min_u32 v4, 447, v4
    v_lshlrev_b32 v7, 3, v4
    ds_read_b64 v[44:45], v7
    """)
    zero(a, 48, 16)
    a("s_waitcnt vmcnt(0) lgkmcnt(0)")
    fma_tile(a, 40, 48, 44, 45, 46)
    a("s_nop 1")
    for m in ["quad_perm:[2,3,0,1]", "row_ror:4", "row_ror:8"]:
        for i in range(16):
            a(f"v_add_f32_dpp v{48+i}, v{48+i}, v{48+i} {m} row_mask:0xf bank_mask:0xf")
        a("s_nop 1")
    swap_reduce16(a, 48)
    a(f"""
    v_lshrrev_b32 v4, 6, v0
    v_lshlrev_b32 v4, 7, v4
    v_lshl_add_u32 v4, v5, 6, v4
    v_bfe_u32 v7, v0, 4, 2
    v_lshl_add_u32 v4, v7, 4, v4
    ds_write_b128 v4, v[48:51] offset:4096
    s_waitcnt lgkmcnt(0)
    s_barrier
    v_cmp_gt_u32 vcc, 32, v0
    s_and_saveexec_b64 s[60:61], vcc
    s_cbranch_execz L_q_end
    v_lshlrev_b32 v4, 2, v0
    """)
    for w in range(14):
        a(f"ds_read_b32 v{8+w}, v4 offset:{4096+w*128}")
    a("s_waitcnt lgkmcnt(0)")
    for w in range(1, 14):
        a(f"v_add_f32 v8, v8, v{8+w}")
    a(f"""
    v_cvt_pk_bf16_f32 v8, v8, v8
    v_lshrrev_b32 v4, 4, v0
    v_lshlrev_b32 v4, 3, v4
    v_and_b32 v5, 7, v0
    v_add_u32 v4, v4, v5
    v_bfe_u32 v5, v0, 3, 1
    v_lshl_add_u32 v4, v5, 12, v4
    v_lshlrev_b32 v4, 1, v4
    v_add_u32 v4, s58, v4
    v_add_u32 v4, {WS_Q}, v4
    global_store_short v4, v8, s[42:43]
L_q_end:
    s_or_b64 exec, exec, s[60:61]
    """)

def k_att(a):
    prologue(a, 256)
    a("""
    v_and_b32 v1, 63, v0
    v_lshrrev_b32 v2, 6, v0      ; wave
    v_lshlrev_b32 v3, 14, v2
    v_lshl_add_u32 v3, v1, 4, v3
    s_lshl_b32 s56, s2, 18       ; wg*262144
    s_waitcnt lgkmcnt(0)
    s_add_u32 s44, s18, s56
    s_addc_u32 s45, s19, 0
    s_add_u32 s46, s20, s56
    s_addc_u32 s47, s21, 0
    """)
    KR = 32
    for t in range(16):
        a(f"global_load_dwordx4 {vr(KR+4*t,4)}, v3, s[44:45] offset:{t*1024 - (0 if t<4 else 0)}" if t < 4 else "")
    a("""
    v_add_u32 v4, 0x1000, v3
    v_add_u32 v5, 0x2000, v3
    v_add_u32 v6, 0x3000, v3
    """)
    for t in range(4, 16):
        a(f"global_load_dwordx4 {vr(KR+4*t,4)}, v{3 + t//4}, s[44:45] offset:{(t%4)*1024}")
    a(f"""
    s_lshr_b32 s57, s2, 3
    s_lshl_b32 s57, s57, 9
    v_and_b32 v7, 31, v1
    v_lshl_add_u32 v7, v7, 4, s57
    v_add_u32 v7, {WS_Q}, v7
    global_load_dwordx4 v[8:11], v7, s[42:43]
    """)
    a("s_waitcnt vmcnt(0)")
    for t in range(16):
        k = KR + 4*t
        a(f"v_dot2_f32_bf16 v{12+t}, v{k}, v8, 0")
        for d in range(1, 4):
            a(f"v_dot2_f32_bf16 v{12+t}, v{k+d}, v{8+d}, v{12+t}")
        a(f"global_load_dwordx4 {vr(k,4)}, v{3 + t//4}, s[46:47] offset:{(t%4)*1024}")
    a("s_nop 1")
    for m in ["quad_perm:[1,0,3,2]", "quad_perm:[2,3,0,1]", "row_half_mirror", "row_mirror"]:
        for t in range(16):
            a(f"v_add_f32_dpp v{12+t}, v{12+t}, v{12+t} {m} row_mask:0xf bank_mask:0xf")
        a("s_nop 1")
    for t in range(16):
        a(f"v_mov_b32 v{96+t}, v{12+t}")
    a("s_nop 1")
    for t in range(16):
        a(f"v_permlane16_swap_b32 v{12+t}, v{96+t}")
    for t in range(16):
        a(f"v_add_f32 v{12+t}, v{12+t}, v{96+t}")
    for t in range(16):
        rnd_bf16(a, 12+t, 28)
    a("s_mov_b32 s58, 0x3db8aa3b")
    for t in range(16):
        a(f"v_mul_f32 v{12+t}, s58, v{12+t}")
    a("v_max_f32 v28, v12, v13")
    for t in range(2, 16):
        a(f"v_max_f32 v28, v28, v{12+t}")
    a("""
    v_mov_b32 v29, v28
    s_nop 1
    v_permlane32_swap_b32 v28, v29
    v_max_f32 v28, v28, v29
    """)
    for t in range(16):
        a(f"v_sub_f32 v{12+t}, v{12+t}, v28")
        a(f"v_exp_f32 v{12+t}, v{12+t}")
    a("s_nop 0")
    a("v_add_f32 v29, v12, v13")
    for t in range(2, 16):
        a(f"v_add_f32 v29, v29, v{12+t}")
    a("""
    v_mov_b32 v30, v29
    s_nop 1
    v_permlane32_swap_b32 v29, v30
    v_add_f32 v29, v29, v30
    """)
    zero(a, 96, 8)
    for t in range(16):
        k = KR + 4*t
        a(f"s_waitcnt vmcnt({15-t})")
        for d in range(4):
            a(f"""
            v_lshlrev_b32 v104, 16, v{k+d}
            v_and_b32 v105, 0xffff0000, v{k+d}
            v_fmac_f32 v{96+2*d}, v{12+t}, v104
            v_fmac_f32 v{96+2*d+1}, v{12+t}, v105
            """)
    a("s_nop 1")
    for i in range(4):
        a(f"v_permlane32_swap_b32 v{96+i}, v{100+i}")
    for i in range(4):
        a(f"v_add_f32 v{96+i}, v{96+i}, v{100+i}")
    a("""
    v_and_b32 v4, 31, v1
    v_lshlrev_b32 v4, 5, v4
    v_lshrrev_b32 v5, 5, v1
    v_lshl_add_u32 v4, v5, 4, v4
    v_lshl_add_u32 v4, v2, 10, v4
    ds_write_b128 v4, v[96:99]
    v_lshlrev_b32 v5, 3, v2
    ds_write_b64 v5, v[28:29] offset:16384
    s_waitcnt lgkmcnt(0)
    s_barrier
    v_cmp_gt_u32 vcc, 256, v0
    s_and_saveexec_b64 s[60:61], vcc
    s_cbranch_execz L_att_end
    v_mov_b32 v5, 0
    """)
    for w in range(8):
        a(f"ds_read_b128 {vr(32+4*w,4)}, v5 offset:{16384+16*w}")
    a("v_lshlrev_b32 v4, 2, v0")
    for w in range(16):
        a(f"ds_read_b32 v{64+w}, v4 offset:{w*1024}")
    a("s_waitcnt lgkmcnt(0)")
    a("v_max_f32 v8, v32, v34")
    for w in range(2, 16):
        a(f"v_max_f32 v8, v8, v{32+2*w}")
    zero(a, 9, 2)
    for w in range(16):
        a(f"""
        v_sub_f32 v11, v{32+2*w}, v8
        v_exp_f32 v11, v11
        s_nop 0
        v_fmac_f32 v9, v11, v{33+2*w}
        v_fmac_f32 v10, v11, v{64+w}
        """)
    a(f"""
    s_lshl_b32 s56, s2, 10
    v_add_u32 v4, s56, v4
    v_add_u32 v4, {WS_PART}, v4
    global_store_dword v4, v10, s[42:43]
    v_cmp_eq_u32 vcc, 0, v0
    s_and_saveexec_b64 s[62:63], vcc
    s_lshl_b32 s56, s2, 3
    v_mov_b32 v4, s56
    v_add_u32 v4, {WS_ML}, v4
    global_store_dwordx2 v4, v[8:9], s[42:43]
L_att_end:
    s_mov_b64 exec, -1
    """)

def k_wo(a):
    prologue(a, 256)
    a("""
    s_and_b32 s56, s2, 7
    s_cmp_eq_u32 s56, 7
    s_cbranch_scc1 L_exit_wo_kernel
    s_lshr_b32 s57, s2, 3        ; bh
    s_and_b32 s58, s57, 15       ; head
    s_lshr_b32 s59, s2, 7        ; b
    v_and_b32 v1, 7, v0          ; cg
    v_lshrrev_b32 v2, 3, v0      ; rg 0..127
    v_mul_u32_u24 v3, 896, v2
    v_lshl_add_u32 v3, v1, 4, v3
    s_mul_i32 s62, s58, 229376   ; head*256*896
    s_lshl_b32 s63, s56, 7
    s_add_u32 s62, s62, s63
    s_add_u32 s63, s62, 114688   ; +128 rows
    s_waitcnt lgkmcnt(0)
    """)
    srd(a, 44, 24, 4096*896)
    a(f"""
    buffer_load_dwordx4 v[8:11], v3, s[44:47], s62 offen
    buffer_load_dwordx4 v[12:15], v3, s[44:47], s63 offen
    v_cmp_gt_u32 vcc, 256, v0
    s_and_saveexec_b64 s[60:61], vcc
    s_cbranch_execz L_wo_nocomb
    s_lshl_b32 s64, s57, 6
    v_mov_b32 v4, s64
    v_add_u32 v4, {WS_ML}, v4
    """)
    for i in range(4):
        a(f"global_load_dwordx4 {vr(32+4*i,4)}, v4, s[42:43] offset:{16*i}")
    a(f"""
    s_lshl_b32 s64, s57, 13      ; bh*8*1024
    v_lshlrev_b32 v4, 2, v0
    v_add_u32 v5, s64, v4
    v_add_u32 v5, {WS_PART}, v5
    v_add_u32 v6, 0x1000, v5
    """)
    for i in range(8):
        a(f"global_load_dword v{48+i}, v{5 + i//4}, s[42:43] offset:{(i%4)*1024}")
    a("s_waitcnt vmcnt(0)")
    a("v_max_f32 v16, v32, v34")
    for w in range(2, 8):
        a(f"v_max_f32 v16, v16, v{32+2*w}")
    zero(a, 17, 2)
    for w in range(8):
        a(f"""
        v_sub_f32 v19, v{32+2*w}, v16
        v_exp_f32 v19, v19
        s_nop 0
        v_fmac_f32 v17, v19, v{33+2*w}
        v_fmac_f32 v18, v19, v{48+w}
        """)
    a("""
    v_rcp_f32 v19, v17
    s_nop 0
    v_mul_f32 v20, v18, v19
    v_fma_f32 v21, -v20, v17, v18
    v_fmac_f32 v20, v21, v19
    """)
    rnd_bf16(a, 20, 21)
    a("""
    ds_write_b32 v4, v20
L_wo_nocomb:
    s_or_b64 exec, exec, s[60:61]
    s_waitcnt lgkmcnt(0)
    s_barrier
    v_lshlrev_b32 v4, 2, v2
    ds_read_b32 v24, v4
    ds_read_b32 v25, v4 offset:512
    """)
    zero(a, 32, 8)
    a("s_waitcnt vmcnt(0) lgkmcnt(0)")
    for i in range(2):
        for d in range(4):
            a(f"""
            v_lshlrev_b32 v26, 16, v{8+4*i+d}
            v_and_b32 v27, 0xffff0000, v{8+4*i+d}
            v_fmac_f32 v{32+2*d}, v{24+i}, v26
            v_fmac_f32 v{32+2*d+1}, v{24+i}, v27
            """)
    a("s_nop 1")
    for i in range(8):
        a(f"v_add_f32_dpp v{32+i}, v{32+i}, v{32+i} row_ror:8 row_mask:0xf bank_mask:0xf")
    a("s_nop 1")
    for i in range(4):
        a(f"v_permlane32_swap_b32 v{32+i}, v{36+i}")
    for i in range(4):
        a(f"v_add_f32 v{32+i}, v{32+i}, v{36+i}")
    a("s_nop 1")
    for i in range(2):
        a(f"v_permlane16_swap_b32 v{32+i}, v{34+i}")
    for i in range(2):
        a(f"v_add_f32 v{32+i}, v{32+i}, v{34+i}")
    a("""
    v_lshrrev_b32 v4, 6, v0
    v_lshlrev_b32 v4, 8, v4
    v_lshl_add_u32 v4, v1, 5, v4
    v_bfe_u32 v5, v0, 4, 2
    v_lshl_add_u32 v4, v5, 3, v4
    ds_write_b64 v4, v[32:33] offset:4096
    s_waitcnt lgkmcnt(0)
    s_barrier
    v_cmp_gt_u32 vcc, 64, v0
    s_and_saveexec_b64 s[60:61], vcc
    s_cbranch_execz L_wo_end
    v_lshlrev_b32 v4, 2, v0
    """)
    for w in range(16):
        a(f"ds_read_b32 v{8+w}, v4 offset:{4096+w*256}")
    a("s_waitcnt lgkmcnt(0)")
    for w in range(1, 16):
        a(f"v_add_f32 v8, v8, v{8+w}")
    a(f"""
    s_lshl_b32 s62, s58, 1
    s_add_u32 s62, s62, s59
    s_mul_i32 s62, s62, 1792
    s_lshl_b32 s63, s56, 8
    s_add_u32 s62, s62, s63
    v_add_u32 v4, s62, v4
    v_add_u32 v4, {WS_ATT}, v4
    global_store_dword v4, v8, s[42:43]
L_wo_end:
    s_or_b64 exec, exec, s[60:61]
    """)

def x1_phase(a):
    a(f"""
    s_mul_i32 s61, s60, 896
    v_lshl_add_u32 v2, v1, 1, s61
    s_mul_i32 s61, s60, {2688*4}
    v_lshl_add_u32 v3, v1, 2, s61
    v_add_u32 v3, {WS_MOD + 2*448*4}, v3
    s_mul_i32 s61, s60, 1792
    v_lshl_add_u32 v4, v1, 2, s61
    v_add_u32 v4, {WS_ATT}, v4
    """)
    for i in range(7):
        a(f"global_load_ushort v{8+i}, v2, s[16:17] offset:{i*128}")
    for i in range(7):
        a(f"global_load_dword v{16+i}, v3, s[42:43] offset:{i*256}")
    zero(a, 33, 7)
    for hh in range(4):
        for h in range(4):
            for i in range(7):
                a(f"global_load_dword v{96+h*7+i}, v4, s[42:43] offset:{i*256}")
            a("v_add_u32 v4, 3584, v4")
        a("s_waitcnt vmcnt(0)")
        for h in range(4):
            for i in range(7):
                a(f"v_add_f32 v{33+i}, v{33+i}, v{96+h*7+i}")
    for i in range(7):
        rnd_bf16(a, 33+i, 5)
        a(f"v_mul_f32 v{33+i}, v{33+i}, v{16+i}")
        rnd_bf16(a, 33+i, 5)
        a(f"v_lshlrev_b32 v{8+i}, 16, v{8+i}")
        a(f"v_add_f32 v{8+i}, v{8+i}, v{33+i}")
        rnd_bf16(a, 8+i, 5)

def k_gu(a):
    prologue(a, 28)
    a("""
    v_and_b32 v1, 7, v0
    v_lshrrev_b32 v2, 3, v0
    v_mul_u32_u24 v3, 3584, v2
    v_lshl_add_u32 v3, v1, 4, v3
    v_mov_b32 v62, v1
    v_mov_b32 v63, v2
    s_lshl_b32 s56, s2, 7
    s_add_u32 s57, s56, 458752
    s_add_u32 s58, s57, 458752
    s_add_u32 s59, s58, 458752
    v_lshrrev_b32 v7, 6, v0
    s_nop 0
    v_readfirstlane_b32 s60, v7
    s_waitcnt lgkmcnt(0)
    """)
    srd(a, 44, 28, 448*3584)
    srd(a, 48, 30, 448*3584)
    for i in range(4):
        a(f"buffer_load_dwordx4 {vr(64+4*i,4)}, v3, s[44:47], s{56+i} offen")
        a(f"buffer_load_dwordx4 {vr(80+4*i,4)}, v3, s[48:51], s{56+i} offen")
    a("""
    v_mov_b32 v5, 0
    v_lshlrev_b32 v6, 2, v0
    v_cmp_le_u32 vcc, 896, v0
    s_and_saveexec_b64 s[62:63], vcc
    ds_write_b32 v6, v5
    s_mov_b64 exec, s[62:63]
    s_cmp_ge_u32 s60, 2
    s_cbranch_scc1 L_gu_skipln
    v_and_b32 v1, 63, v0
    """)
    x1_phase(a)
    a(f"""
    s_mul_i32 s61, s60, {2688*4}
    v_lshl_add_u32 v3, v1, 2, s61
    """)
    a(f"v_add_u32 v3, {WS_MOD + 3*448*4}, v3")
    for i in range(7):
        a(f"global_load_dword v{16+i}, v3, s[42:43] offset:{i*256}")
    for i in range(7):
        a(f"global_load_dword v{23+i}, v3, s[42:43] offset:{1792+i*256}")
    a(f"""
    v_lshlrev_b32 v{16+14+7}, 3, v1
    s_lshl_b32 s61, s60, 2
    v_add_u32 v{16+14+7}, s61, v{16+14+7}
    s_waitcnt vmcnt(0)
    """)
    ln_phase(a, 8, 3, 4, 0, 16)
    a("""
L_gu_skipln:
    s_waitcnt lgkmcnt(0)
    s_barrier
    v_lshlrev_b32 v4, 3, v63
    ds_read_b64 v[24:25], v4
    ds_read_b64 v[26:27], v4 offset:1024
    ds_read_b64 v[28:29], v4 offset:2048
    ds_read_b64 v[30:31], v4 offset:3072
    """)
    zero(a, 96, 32)
    a("s_waitcnt vmcnt(0) lgkmcnt(0)")
    for i in range(4):
        fma_tile(a, 64+4*i, 96, 24+2*i, 25+2*i, 48)
        fma_tile(a, 80+4*i, 112, 24+2*i, 25+2*i, 48)
    a("s_nop 1")
    for i in range(32):
        a(f"v_add_f32_dpp v{96+i}, v{96+i}, v{96+i} row_ror:8 row_mask:0xf bank_mask:0xf")
    swap_reduce16(a, 96)
    swap_reduce16(a, 112)
    a("""
    v_lshrrev_b32 v4, 6, v0
    v_lshlrev_b32 v4, 9, v4
    v_lshl_add_u32 v4, v62, 6, v4
    v_bfe_u32 v5, v0, 4, 2
    v_lshl_add_u32 v4, v5, 4, v4
    ds_write_b128 v4, v[96:99] offset:4096
    ds_write_b128 v4, v[112:115] offset:12288
    s_waitcnt lgkmcnt(0)
    s_barrier
    v_cmp_gt_u32 vcc, 128, v0
    s_and_saveexec_b64 s[60:61], vcc
    s_cbranch_execz L_gu_end
    v_lshlrev_b32 v4, 2, v0
    """)
    for w in range(16):
        a(f"ds_read_b32 v{8+w}, v4 offset:{4096+w*512}")
        a(f"ds_read_b32 v{32+w}, v4 offset:{12288+w*512}")
    a("s_waitcnt lgkmcnt(0)")
    for w in range(1, 16):
        a(f"v_add_f32 v8, v8, v{8+w}")
        a(f"v_add_f32 v32, v32, v{32+w}")
    rnd_bf16(a, 8, 9)
    rnd_bf16(a, 32, 9)
    a("""
    v_mul_f32 v9, v8, v8
    v_mul_f32 v9, v9, v8
    v_mov_b32 v10, 0x3d372713
    v_fma_f32 v9, v9, v10, v8
    v_mul_f32 v9, 0x40135761, v9    ; 2*0.7978845608*log2e = 2.3022082
    v_exp_f32 v9, v9
    s_nop 0
    v_add_f32 v9, 1.0, v9
    v_rcp_f32 v9, v9
    s_nop 0
    v_fma_f32 v9, v9, -2.0, 1.0     ; tanh
    v_add_f32 v9, 1.0, v9
    v_mul_f32 v9, 0.5, v9
    v_mul_f32 v9, v9, v8
    """)
    rnd_bf16(a, 9, 10)
    a("v_mul_f32 v9, v9, v32")
    rnd_bf16(a, 9, 10)
    a(f"""
    v_lshrrev_b32 v4, 4, v0
    v_lshlrev_b32 v4, 3, v4
    v_and_b32 v5, 7, v0
    v_add_u32 v4, v4, v5
    v_bfe_u32 v5, v0, 3, 1
    v_mul_u32_u24 v5, 1792, v5
    v_add_u32 v4, v4, v5
    v_lshlrev_b32 v4, 2, v4
    s_lshl_b32 s56, s2, 8
    v_add_u32 v4, s56, v4
    v_add_u32 v4, {WS_ACT}, v4
    global_store_dword v4, v9, s[42:43]
L_gu_end:
    s_or_b64 exec, exec, s[60:61]
    """)

def k_down(a):
    prologue(a, 28)
    a("""
    v_and_b32 v62, 1, v0         ; cg
    v_lshrrev_b32 v63, 1, v0     ; rg 0..511
    v_mul_u32_u24 v3, 896, v63
    v_lshl_add_u32 v3, v62, 4, v3
    s_lshl_b32 s56, s2, 5
    s_add_u32 s57, s56, 458752
    s_add_u32 s58, s57, 458752
    s_add_u32 s59, s58, 458752
    v_lshrrev_b32 v7, 6, v0
    s_nop 0
    v_readfirstlane_b32 s60, v7
    s_waitcnt lgkmcnt(0)
    """)
    srd(a, 44, 32, 1792*896)
    for i in range(4):
        a(f"buffer_load_dwordx4 {vr(64+4*i,4)}, v3, s[44:47], s{56+i} offen")
    a(f"""
    v_lshlrev_b32 v4, 2, v0
    v_add_u32 v4, {WS_ACT}, v4
    v_mov_b32 v26, 0
    v_mov_b32 v27, 0
    global_load_dword v24, v4, s[42:43]
    v_add_u32 v5, 7168, v4
    global_load_dword v25, v5, s[42:43]
    v_cmp_gt_u32 vcc, 768, v0
    s_and_saveexec_b64 s[62:63], vcc
    v_add_u32 v6, 4096, v4
    v_add_u32 v7, 4096, v5
    global_load_dword v26, v6, s[42:43]
    global_load_dword v27, v7, s[42:43]
    s_mov_b64 exec, s[62:63]
    v_lshlrev_b32 v4, 3, v0
    s_waitcnt vmcnt(0)
    ds_write_b64 v4, v[24:25]
    ds_write_b64 v4, v[26:27] offset:8192
    s_cmp_ge_u32 s60, 2
    s_cbranch_scc1 L_dn_skip
    v_and_b32 v1, 63, v0
    """)
    x1_phase(a)
    a(f"""
    s_mul_i32 s61, s60, {2688*4}
    v_lshl_add_u32 v3, v1, 2, s61
    """)
    a(f"v_add_u32 v3, {WS_MOD + 5*448*4}, v3")
    for i in range(7):
        a(f"global_load_dword v{16+i}, v3, s[42:43] offset:{i*256}")
    a(f"""
    s_mul_i32 s61, s60, 1792
    v_lshl_add_u32 v3, v1, 2, s61
    s_waitcnt vmcnt(0)
    """)
    for i in range(7):
        a(f"ds_write_b32 v3, v{8+i} offset:{32768+i*256}")
        a(f"ds_write_b32 v3, v{16+i} offset:{36864+i*256}")
    a("""
L_dn_skip:
    s_waitcnt lgkmcnt(0)
    s_barrier
    v_lshlrev_b32 v4, 3, v63
    ds_read_b64 v[24:25], v4
    ds_read_b64 v[26:27], v4 offset:4096
    ds_read_b64 v[28:29], v4 offset:8192
    ds_read_b64 v[30:31], v4 offset:12288
    """)
    zero(a, 32, 16)
    a("s_waitcnt vmcnt(0) lgkmcnt(0)")
    for i in range(4):
        fma_tile(a, 64+4*i, 32, 24+2*i, 25+2*i, 48)
    a("s_nop 1")
    for m in ["quad_perm:[2,3,0,1]", "row_ror:4", "row_ror:8"]:
        for i in range(16):
            a(f"v_add_f32_dpp v{32+i}, v{32+i}, v{32+i} {m} row_mask:0xf bank_mask:0xf")
        a("s_nop 1")
    swap_reduce16(a, 32)
    a("""
    v_lshrrev_b32 v4, 6, v0
    v_lshlrev_b32 v4, 7, v4
    v_lshl_add_u32 v4, v62, 6, v4
    v_bfe_u32 v7, v0, 4, 2
    v_lshl_add_u32 v4, v7, 4, v4
    ds_write_b128 v4, v[32:35] offset:16384
    s_waitcnt lgkmcnt(0)
    s_barrier
    v_cmp_gt_u32 vcc, 32, v0
    s_and_saveexec_b64 s[60:61], vcc
    s_cbranch_execz L_dn_end
    v_lshlrev_b32 v4, 2, v0
    """)
    for w in range(16):
        a(f"ds_read_b32 v{8+w}, v4 offset:{16384+w*128}")
    a("""
    v_lshrrev_b32 v4, 4, v0
    v_lshlrev_b32 v4, 3, v4
    v_and_b32 v5, 7, v0
    v_add_u32 v4, v4, v5
    s_lshl_b32 s56, s2, 4
    v_add_u32 v4, s56, v4
    v_bfe_u32 v5, v0, 3, 1
    v_mul_u32_u24 v5, 448, v5
    v_add_u32 v4, v4, v5         ; b*448+col
    v_lshlrev_b32 v5, 2, v4
    ds_read_b32 v30, v5 offset:32768
    ds_read_b32 v31, v5 offset:36864
    s_waitcnt lgkmcnt(0)
    """)
    for w in range(1, 16):
        a(f"v_add_f32 v8, v8, v{8+w}")
    rnd_bf16(a, 8, 9)
    a("v_mul_f32 v8, v8, v31")
    rnd_bf16(a, 8, 9)
    a("""
    v_add_f32 v8, v8, v30
    v_cvt_pk_bf16_f32 v8, v8, v8
    v_lshlrev_b32 v4, 1, v4
    global_store_short v4, v8, s[38:39]
L_dn_end:
    s_or_b64 exec, exec, s[60:61]
    """)

KERNELS = [("mod_kernel", k_mod, 42, 16384), ("q_kernel", k_q, 256, 8192), ("att_kernel", k_att, 256, 16384+256),
           ("wo_kernel", k_wo, 256, 8192+4096), ("gu_kernel", k_gu, 28, 20480), ("down_kernel", k_down, 28, 40960)]

def main():
    hdr = open("cdna_kernels/" + NAME + ".s.ref").read().split("\n")
    out = []
    for l in hdr:
        if l.startswith("; Override") or l.startswith("; grid=") or l.startswith("; @launch") or l.startswith(".amdgcn"):
            break
        out.append(l)
    for k, f, g, lds in KERNELS:
        out.append(f"; @launch kernel={k} grid=({g},1,1) block=(1024,1,1) lds={lds}")
    out.append('.amdgcn_target "amdgcn-amd-amdhsa--gfx950"')
    out.append(".text")
    body = []
    for k, f, g, lds in KERNELS:
        a = Asm(); a.kname = k
        f(a)
        body.append(f".globl {k}\n.p2align 8\n.type {k},@function\n{k}:\n" + a.text() + f"L_exit_{k}:\n    s_endpgm\n")
    out.append("\n".join(body))
    out.append('.section .rodata,"a"')
    for k, f, g, lds in KERNELS:
        out.append(f""".p2align 6
.amdhsa_kernel {k}
  .amdhsa_next_free_vgpr 128
  .amdhsa_next_free_sgpr 102
  .amdhsa_accum_offset 128
  .amdhsa_group_segment_fixed_size 0
  .amdhsa_kernarg_size 112
  .amdhsa_user_sgpr_count 2
  .amdhsa_user_sgpr_kernarg_segment_ptr 1
  .amdhsa_system_sgpr_workgroup_id_x 1
.end_amdhsa_kernel""")
    open("cdna_kernels/" + NAME + ".s", "w").write("\n".join(out) + "\n")

main()
```

```python
import sys
from asmlib import *

NAME = "adaLN_cond__mha_block_cached__geglu_ffn__decode"
LOG2E = "0x3fb8aa3b"

WS_MOD  = 0x00000
WS_Q    = 0x08000
WS_PART = 0x10000
WS_ML   = 0x50000
WS_ATT  = 0x60000
WS_ACT  = 0x80000

def prologue(a, nwg):
    a(f"""
    s_cmp_ge_u32 s2, {nwg}
    s_cbranch_scc1 L_exit_{a.kname}
    s_load_dwordx16 s[16:31], s[0:1], 0
    s_load_dwordx8 s[32:39], s[0:1], 64
    s_load_dwordx4 s[40:43], s[0:1], 96
    """)

def srd(a, s, ptr, size):
    a(f"""
    s_mov_b32 s{s}, s{ptr}
    s_and_b32 s{s+1}, s{ptr+1}, 0xffff
    s_mov_b32 s{s+2}, {size}
    s_mov_b32 s{s+3}, 0x00020000
    """)

def rnd_bf16(a, v, t):
    a(f"""
    v_cvt_pk_bf16_f32 v{t}, v{v}, v{v}
    v_lshlrev_b32 v{v}, 16, v{t}
    """)

def wave_allsum(a, v, t):
    a(f"""
    s_nop 1
    v_add_f32_dpp v{v}, v{v}, v{v} quad_perm:[1,0,3,2] row_mask:0xf bank_mask:0xf
    s_nop 1
    v_add_f32_dpp v{v}, v{v}, v{v} quad_perm:[2,3,0,1] row_mask:0xf bank_mask:0xf
    s_nop 1
    v_add_f32_dpp v{v}, v{v}, v{v} row_half_mirror row_mask:0xf bank_mask:0xf
    s_nop 1
    v_add_f32_dpp v{v}, v{v}, v{v} row_mirror row_mask:0xf bank_mask:0xf
    v_mov_b32 v{t}, v{v}
    s_nop 1
    v_permlane16_swap_b32 v{v}, v{t}
    v_add_f32 v{v}, v{v}, v{t}
    v_mov_b32 v{t}, v{v}
    s_nop 1
    v_permlane32_swap_b32 v{v}, v{t}
    v_add_f32 v{v}, v{v}, v{t}
    """)

def fma_tile(a, w, acc, av0, av1, t):
    for d in range(4):
        a(f"""
        v_lshlrev_b32 v{t}, 16, v{w+d}
        v_and_b32 v{t+1}, 0xffff0000, v{w+d}
        v_fmac_f32 v{acc+2*d}, v{av0}, v{t}
        v_fmac_f32 v{acc+2*d+1}, v{av0}, v{t+1}
        v_fmac_f32 v{acc+8+2*d}, v{av1}, v{t}
        v_fmac_f32 v{acc+8+2*d+1}, v{av1}, v{t+1}
        """)

def swap_reduce16(a, acc):
    a("s_nop 1")
    for i in range(8):
        a(f"v_permlane32_swap_b32 v{acc+i}, v{acc+i+8}")
    for i in range(8):
        a(f"v_add_f32 v{acc+i}, v{acc+i}, v{acc+i+8}")
    a("s_nop 1")
    for i in range(4):
        a(f"v_permlane16_swap_b32 v{acc+i}, v{acc+i+4}")
    for i in range(4):
        a(f"v_add_f32 v{acc+i}, v{acc+i}, v{acc+i+4}")

def zero(a, r, n):
    for i in range(n):
        a(f"v_mov_b32 v{r+i}, 0")

def ln_phase(a, xsrc_regs, modoff_shift, modoff_scale, lds_base, tmp):
    xs = xsrc_regs
    T = tmp + 14
    a(f"v_add_f32 v{T}, v{xs}, v{xs+1}")
    for i in range(2, 7):
        a(f"v_add_f32 v{T}, v{T}, v{xs+i}")
    wave_allsum(a, T, T+1)
    a(f"v_mul_f32 v{T}, 0x3b124925, v{T}")
    a(f"v_sub_f32 v{T+2}, v{xs}, v{T}")
    a(f"v_mul_f32 v{T+3}, v{T+2}, v{T+2}")
    for i in range(1, 7):
        a(f"v_sub_f32 v{T+2}, v{xs+i}, v{T}")
        a(f"v_fmac_f32 v{T+3}, v{T+2}, v{T+2}")
    wave_allsum(a, T+3, T+1)
    a(f"v_mul_f32 v{T+3}, 0x3b124925, v{T+3}")
    rnd_bf16(a, T, T+1)
    rnd_bf16(a, T+3, T+1)
    a(f"v_add_f32 v{T+3}, 0x3727c5ac, v{T+3}")
    rnd_bf16(a, T+3, T+1)
    a(f"v_sqrt_f32 v{T+3}, v{T+3}")
    a("s_nop 0")
    rnd_bf16(a, T+3, T+1)
    a(f"v_rcp_f32 v{T+4}, v{T+3}")
    a("s_nop 0")
    for i in range(7):
        d = T+2
        a(f"v_sub_f32 v{d}, v{xs+i}, v{T}")
        rnd_bf16(a, d, T+1)
        a(f"v_mul_f32 v{T+5}, v{d}, v{T+4}")
        a(f"v_fma_f32 v{T+6}, -v{T+5}, v{T+3}, v{d}")
        a(f"v_fmac_f32 v{T+5}, v{T+6}, v{T+4}")
        rnd_bf16(a, T+5, T+1)
        a(f"v_add_f32 v{T+6}, 1.0, v{tmp+7+i}")
        rnd_bf16(a, T+6, T+1)
        a(f"v_mul_f32 v{T+5}, v{T+5}, v{T+6}")
        rnd_bf16(a, T+5, T+1)
        a(f"v_add_f32 v{T+5}, v{T+5}, v{tmp+i}")
        rnd_bf16(a, T+5, T+1)
        a(f"ds_write_b32 v{T+7}, v{T+5} offset:{lds_base + i*512}")

def k_mod(a):
    prologue(a, 42)
    a("""
    v_and_b32 v1, 7, v0
    v_lshrrev_b32 v2, 3, v0
    v_mul_u32_u24 v3, 5376, v2
    v_lshl_add_u32 v3, v1, 4, v3
    s_lshl_b32 s56, s2, 7
    s_add_u32 s57, s56, 688128
    s_add_u32 s58, s57, 688128
    s_add_u32 s59, s58, 688128
    s_waitcnt lgkmcnt(0)
    """)
    srd(a, 44, 36, 448*5376)
    a("""
    buffer_load_dwordx4 v[8:11], v3, s[44:47], s56 offen
    buffer_load_dwordx4 v[12:15], v3, s[44:47], s57 offen
    buffer_load_dwordx4 v[16:19], v3, s[44:47], s58 offen
    buffer_load_dwordx4 v[20:23], v3, s[44:47], s59 offen
    ; silu(c)
    v_mov_b32 v5, 0
    v_lshlrev_b32 v6, 2, v0
    v_cmp_gt_u32 vcc, 896, v0
    s_and_saveexec_b64 s[60:61], vcc
    s_cbranch_execz L_mod_noc
    v_lshlrev_b32 v4, 1, v0
    global_load_ushort v5, v4, s[34:35]
    v_cmp_le_u32 vcc, 448, v0
    v_cndmask_b32 v6, 0, 1, vcc      ; b
    v_mul_u32_u24 v7, 448, v6
    v_sub_u32 v7, v0, v7             ; k
    v_lshl_add_u32 v6, v7, 1, v6     ; k*2+b
    v_lshlrev_b32 v6, 2, v6
    s_waitcnt vmcnt(0)
    v_lshlrev_b32 v5, 16, v5
    v_mul_f32 v7, 0xbfb8aa3b, v5
    v_exp_f32 v7, v7
    s_nop 0
    v_add_f32 v7, 1.0, v7
    v_rcp_f32 v7, v7
    s_nop 0
    v_mul_f32 v5, v5, v7
    """)
    rnd_bf16(a, 5, 7)
    a("""
L_mod_noc:
    s_or_b64 exec, exec, s[60:61]
    ds_write_b32 v6, v5
    s_waitcnt lgkmcnt(0)
    s_barrier
    v_lshlrev_b32 v4, 3, v2
    ds_read_b64 v[24:25], v4
    ds_read_b64 v[26:27], v4 offset:1024
    ds_read_b64 v[28:29], v4 offset:2048
    ds_read_b64 v[30:31], v4 offset:3072
    """)
    zero(a, 32, 16)
    a("s_waitcnt vmcnt(0) lgkmcnt(0)")
    for i in range(4):
        fma_tile(a, 8+4*i, 32, 24+2*i, 25+2*i, 48)
    a("s_nop 1")
    for i in range(16):
        a(f"v_add_f32_dpp v{32+i}, v{32+i}, v{32+i} row_ror:8 row_mask:0xf bank_mask:0xf")
    swap_reduce16(a, 32)
    a("""
    v_lshrrev_b32 v4, 6, v0
    v_lshlrev_b32 v4, 9, v4
    v_lshl_add_u32 v4, v1, 6, v4
    v_bfe_u32 v5, v0, 4, 2
    v_lshl_add_u32 v4, v5, 4, v4
    ds_write_b128 v4, v[32:35] offset:4096
    s_waitcnt lgkmcnt(0)
    s_barrier
    v_cmp_gt_u32 vcc, 128, v0
    s_and_saveexec_b64 s[60:61], vcc
    s_cbranch_execz L_mod_end
    v_lshlrev_b32 v4, 2, v0
    """)
    for w in range(16):
        a(f"ds_read_b32 v{8+w}, v4 offset:{4096+w*512}")
    a("s_waitcnt lgkmcnt(0)")
    for w in range(1, 16):
        a(f"v_add_f32 v8, v8, v{8+w}")
    rnd_bf16(a, 8, 9)
    a(f"""
    v_lshrrev_b32 v4, 4, v0
    v_lshlrev_b32 v4, 3, v4
    v_and_b32 v5, 7, v0
    v_add_u32 v4, v4, v5
    v_bfe_u32 v5, v0, 3, 1
    v_mul_u32_u24 v5, 2688, v5
    v_add_u32 v4, v4, v5
    v_lshlrev_b32 v4, 2, v4
    s_lshl_b32 s56, s2, 8
    v_add_u32 v4, s56, v4
    global_store_dword v4, v8, s[42:43] offset:{WS_MOD}
L_mod_end:
    s_or_b64 exec, exec, s[60:61]
    """)

def load_x_mod(a, shift_idx, scale_idx):
    a(f"""
    s_mul_i32 s61, s60, 896
    v_lshl_add_u32 v2, v1, 1, s61
    s_mul_i32 s61, s60, {2688*4}
    v_lshl_add_u32 v3, v1, 2, s61
    """)
    for i in range(7):
        a(f"global_load_ushort v{8+i}, v2, s[16:17] offset:{i*128}")
    a(f"v_add_u32 v4, {WS_MOD + shift_idx*448*4}, v3")
    a(f"v_add_u32 v3, {WS_MOD + scale_idx*448*4}, v3")
    for i in range(7):
        a(f"global_load_dword v{16+i}, v4, s[42:43] offset:{i*256}")
    for i in range(7):
        a(f"global_load_dword v{23+i}, v3, s[42:43] offset:{i*256}")

def k_q(a):
    prologue(a, 256)
    a("""
    s_lshr_b32 s56, s2, 4       ; head
    s_and_b32 s57, s2, 15       ; i
    s_lshl_b32 s58, s56, 9
    s_lshl_b32 s59, s57, 5
    s_add_u32 s58, s58, s59
    v_lshrrev_b32 v4, 1, v0     ; row
    v_and_b32 v5, 1, v0         ; cg
    v_lshlrev_b32 v6, 13, v4
    v_lshl_add_u32 v6, v5, 4, v6
    v_and_b32 v1, 63, v0
    v_lshrrev_b32 v7, 6, v0
    s_nop 0
    v_readfirstlane_b32 s60, v7
    s_waitcnt lgkmcnt(0)
    """)
    srd(a, 44, 22, 448*8192)
    a("""
    buffer_load_dwordx4 v[40:43], v6, s[44:47], s58 offen
    s_cmp_ge_u32 s60, 2
    s_cbranch_scc1 L_q_skipln
    """)
    load_x_mod(a, 0, 1)
    a("s_waitcnt vmcnt(0)")
    for i in range(7):
        a(f"v_lshlrev_b32 v{8+i}, 16, v{8+i}")
    a(f"""
    v_lshlrev_b32 v{16+14+7}, 3, v1
    s_lshl_b32 s61, s60, 2
    v_add_u32 v{16+14+7}, s61, v{16+14+7}
    """)
    ln_phase(a, 8, 0, 1, 0, 16)
    a(f"""
L_q_skipln:
    s_waitcnt lgkmcnt(0)
    s_barrier
    v_lshrrev_b32 v4, 1, v0
    v_min_u32 v4, 447, v4
    v_lshlrev_b32 v7, 3, v4
    ds_read_b64 v[44:45], v7
    """)
    zero(a, 48, 16)
    a("s_waitcnt vmcnt(0) lgkmcnt(0)")
    fma_tile(a, 40, 48, 44, 45, 46)
    a("s_nop 1")
    for m in ["quad_perm:[2,3,0,1]", "row_ror:4", "row_ror:8"]:
        for i in range(16):
            a(f"v_add_f32_dpp v{48+i}, v{48+i}, v{48+i} {m} row_mask:0xf bank_mask:0xf")
        a("s_nop 1")
    swap_reduce16(a, 48)
    a(f"""
    v_lshrrev_b32 v4, 6, v0
    v_lshlrev_b32 v4, 7, v4
    v_lshl_add_u32 v4, v5, 6, v4
    v_bfe_u32 v7, v0, 4, 2
    v_lshl_add_u32 v4, v7, 4, v4
    ds_write_b128 v4, v[48:51] offset:4096
    s_waitcnt lgkmcnt(0)
    s_barrier
    v_cmp_gt_u32 vcc, 32, v0
    s_and_saveexec_b64 s[60:61], vcc
    s_cbranch_execz L_q_end
    v_lshlrev_b32 v4, 2, v0
    """)
    for w in range(14):
        a(f"ds_read_b32 v{8+w}, v4 offset:{4096+w*128}")
    a("s_waitcnt lgkmcnt(0)")
    for w in range(1, 14):
        a(f"v_add_f32 v8, v8, v{8+w}")
    a(f"""
    v_cvt_pk_bf16_f32 v8, v8, v8
    v_lshrrev_b32 v4, 4, v0
    v_lshlrev_b32 v4, 3, v4
    v_and_b32 v5, 7, v0
    v_add_u32 v4, v4, v5
    v_bfe_u32 v5, v0, 3, 1
    v_lshl_add_u32 v4, v5, 12, v4
    v_lshlrev_b32 v4, 1, v4
    v_add_u32 v4, s58, v4
    v_add_u32 v4, {WS_Q}, v4
    global_store_short v4, v8, s[42:43]
L_q_end:
    s_or_b64 exec, exec, s[60:61]
    """)

def k_att(a):
    prologue(a, 256)
    a("""
    v_and_b32 v1, 63, v0
    v_lshrrev_b32 v2, 6, v0      ; wave
    v_lshlrev_b32 v3, 14, v2
    v_lshl_add_u32 v3, v1, 4, v3
    s_lshl_b32 s56, s2, 18       ; wg*262144
    s_waitcnt lgkmcnt(0)
    s_add_u32 s44, s18, s56
    s_addc_u32 s45, s19, 0
    s_add_u32 s46, s20, s56
    s_addc_u32 s47, s21, 0
    """)
    KR = 32
    for t in range(16):
        a(f"global_load_dwordx4 {vr(KR+4*t,4)}, v3, s[44:45] offset:{t*1024} nt" if t < 4 else "")
    a("""
    v_add_u32 v4, 0x1000, v3
    v_add_u32 v5, 0x2000, v3
    v_add_u32 v6, 0x3000, v3
    """)
    for t in range(4, 16):
        a(f"global_load_dwordx4 {vr(KR+4*t,4)}, v{3 + t//4}, s[44:45] offset:{(t%4)*1024} nt")
    a(f"""
    s_lshr_b32 s57, s2, 3
    s_lshl_b32 s57, s57, 9
    v_and_b32 v7, 31, v1
    v_lshl_add_u32 v7, v7, 4, s57
    v_add_u32 v7, {WS_Q}, v7
    global_load_dwordx4 v[8:11], v7, s[42:43]
    """)
    a("s_waitcnt vmcnt(0)")
    for t in range(16):
        k = KR + 4*t
        a(f"v_dot2_f32_bf16 v{12+t}, v{k}, v8, 0")
        for d in range(1, 4):
            a(f"v_dot2_f32_bf16 v{12+t}, v{k+d}, v{8+d}, v{12+t}")
        a(f"global_load_dwordx4 {vr(k,4)}, v{3 + t//4}, s[46:47] offset:{(t%4)*1024} nt")
    a("s_nop 1")
    for m in ["quad_perm:[1,0,3,2]", "quad_perm:[2,3,0,1]", "row_half_mirror", "row_mirror"]:
        for t in range(16):
            a(f"v_add_f32_dpp v{12+t}, v{12+t}, v{12+t} {m} row_mask:0xf bank_mask:0xf")
        a("s_nop 1")
    for t in range(16):
        a(f"v_mov_b32 v{96+t}, v{12+t}")
    a("s_nop 1")
    for t in range(16):
        a(f"v_permlane16_swap_b32 v{12+t}, v{96+t}")
    for t in range(16):
        a(f"v_add_f32 v{12+t}, v{12+t}, v{96+t}")
    for t in range(16):
        rnd_bf16(a, 12+t, 28)
    a("s_mov_b32 s58, 0x3db8aa3b")
    for t in range(16):
        a(f"v_mul_f32 v{12+t}, s58, v{12+t}")
    a("v_max_f32 v28, v12, v13")
    for t in range(2, 16):
        a(f"v_max_f32 v28, v28, v{12+t}")
    a("""
    v_mov_b32 v29, v28
    s_nop 1
    v_permlane32_swap_b32 v28, v29
    v_max_f32 v28, v28, v29
    """)
    for t in range(16):
        a(f"v_sub_f32 v{12+t}, v{12+t}, v28")
        a(f"v_exp_f32 v{12+t}, v{12+t}")
    a("s_nop 0")
    a("v_add_f32 v29, v12, v13")
    for t in range(2, 16):
        a(f"v_add_f32 v29, v29, v{12+t}")
    a("""
    v_mov_b32 v30, v29
    s_nop 1
    v_permlane32_swap_b32 v29, v30
    v_add_f32 v29, v29, v30
    """)
    zero(a, 96, 8)
    for t in range(16):
        k = KR + 4*t
        a(f"s_waitcnt vmcnt({15-t})")
        for d in range(4):
            a(f"""
            v_lshlrev_b32 v104, 16, v{k+d}
            v_and_b32 v105, 0xffff0000, v{k+d}
            v_fmac_f32 v{96+2*d}, v{12+t}, v104
            v_fmac_f32 v{96+2*d+1}, v{12+t}, v105
            """)
    a("s_nop 1")
    for i in range(4):
        a(f"v_permlane32_swap_b32 v{96+i}, v{100+i}")
    for i in range(4):
        a(f"v_add_f32 v{96+i}, v{96+i}, v{100+i}")
    a("""
    v_and_b32 v4, 31, v1
    v_lshlrev_b32 v4, 5, v4
    v_lshrrev_b32 v5, 5, v1
    v_lshl_add_u32 v4, v5, 4, v4
    v_lshl_add_u32 v4, v2, 10, v4
    ds_write_b128 v4, v[96:99]
    v_lshlrev_b32 v5, 3, v2
    ds_write_b64 v5, v[28:29] offset:16384
    s_waitcnt lgkmcnt(0)
    s_barrier
    v_cmp_gt_u32 vcc, 256, v0
    s_and_saveexec_b64 s[60:61], vcc
    s_cbranch_execz L_att_end
    v_mov_b32 v5, 0
    """)
    for w in range(8):
        a(f"ds_read_b128 {vr(32+4*w,4)}, v5 offset:{16384+16*w}")
    a("v_lshlrev_b32 v4, 2, v0")
    for w in range(16):
        a(f"ds_read_b32 v{64+w}, v4 offset:{w*1024}")
    a("s_waitcnt lgkmcnt(0)")
    a("v_max_f32 v8, v32, v34")
    for w in range(2, 16):
        a(f"v_max_f32 v8, v8, v{32+2*w}")
    zero(a, 9, 2)
    for w in range(16):
        a(f"""
        v_sub_f32 v11, v{32+2*w}, v8
        v_exp_f32 v11, v11
        s_nop 0
        v_fmac_f32 v9, v11, v{33+2*w}
        v_fmac_f32 v10, v11, v{64+w}
        """)
    a(f"""
    s_lshl_b32 s56, s2, 10
    v_add_u32 v4, s56, v4
    v_add_u32 v4, {WS_PART}, v4
    global_store_dword v4, v10, s[42:43]
    v_cmp_eq_u32 vcc, 0, v0
    s_and_saveexec_b64 s[62:63], vcc
    s_lshl_b32 s56, s2, 3
    v_mov_b32 v4, s56
    v_add_u32 v4, {WS_ML}, v4
    global_store_dwordx2 v4, v[8:9], s[42:43]
L_att_end:
    s_mov_b64 exec, -1
    """)

def k_wo(a):
    prologue(a, 256)
    a("""
    s_and_b32 s56, s2, 7
    s_cmp_eq_u32 s56, 7
    s_cbranch_scc1 L_exit_wo_kernel
    s_lshr_b32 s57, s2, 3        ; bh
    s_and_b32 s58, s57, 15       ; head
    s_lshr_b32 s59, s2, 7        ; b
    v_and_b32 v1, 7, v0          ; cg
    v_lshrrev_b32 v2, 3, v0      ; rg 0..127
    v_mul_u32_u24 v3, 896, v2
    v_lshl_add_u32 v3, v1, 4, v3
    s_mul_i32 s62, s58, 229376   ; head*256*896
    s_lshl_b32 s63, s56, 7
    s_add_u32 s62, s62, s63
    s_add_u32 s63, s62, 114688   ; +128 rows
    s_waitcnt lgkmcnt(0)
    """)
    srd(a, 44, 24, 4096*896)
    a(f"""
    buffer_load_dwordx4 v[8:11], v3, s[44:47], s62 offen
    buffer_load_dwordx4 v[12:15], v3, s[44:47], s63 offen
    v_cmp_gt_u32 vcc, 256, v0
    s_and_saveexec_b64 s[60:61], vcc
    s_cbranch_execz L_wo_nocomb
    s_lshl_b32 s64, s57, 6
    v_mov_b32 v4, s64
    v_add_u32 v4, {WS_ML}, v4
    """)
    for i in range(4):
        a(f"global_load_dwordx4 {vr(32+4*i,4)}, v4, s[42:43] offset:{16*i}")
    a(f"""
    s_lshl_b32 s64, s57, 13      ; bh*8*1024
    v_lshlrev_b32 v4, 2, v0
    v_add_u32 v5, s64, v4
    v_add_u32 v5, {WS_PART}, v5
    v_add_u32 v6, 0x1000, v5
    """)
    for i in range(8):
        a(f"global_load_dword v{48+i}, v{5 + i//4}, s[42:43] offset:{(i%4)*1024}")
    a("s_waitcnt vmcnt(0)")
    a("v_max_f32 v16, v32, v34")
    for w in range(2, 8):
        a(f"v_max_f32 v16, v16, v{32+2*w}")
    zero(a, 17, 2)
    for w in range(8):
        a(f"""
        v_sub_f32 v19, v{32+2*w}, v16
        v_exp_f32 v19, v19
        s_nop 0
        v_fmac_f32 v17, v19, v{33+2*w}
        v_fmac_f32 v18, v19, v{48+w}
        """)
    a("""
    v_rcp_f32 v19, v17
    s_nop 0
    v_mul_f32 v20, v18, v19
    v_fma_f32 v21, -v20, v17, v18
    v_fmac_f32 v20, v21, v19
    """)
    rnd_bf16(a, 20, 21)
    a("""
    ds_write_b32 v4, v20
L_wo_nocomb:
    s_or_b64 exec, exec, s[60:61]
    s_waitcnt lgkmcnt(0)
    s_barrier
    v_lshlrev_b32 v4, 2, v2
    ds_read_b32 v24, v4
    ds_read_b32 v25, v4 offset:512
    """)
    zero(a, 32, 8)
    a("s_waitcnt vmcnt(0) lgkmcnt(0)")
    for i in range(2):
        for d in range(4):
            a(f"""
            v_lshlrev_b32 v26, 16, v{8+4*i+d}
            v_and_b32 v27, 0xffff0000, v{8+4*i+d}
            v_fmac_f32 v{32+2*d}, v{24+i}, v26
            v_fmac_f32 v{32+2*d+1}, v{24+i}, v27
            """)
    a("s_nop 1")
    for i in range(8):
        a(f"v_add_f32_dpp v{32+i}, v{32+i}, v{32+i} row_ror:8 row_mask:0xf bank_mask:0xf")
    a("s_nop 1")
    for i in range(4):
        a(f"v_permlane32_swap_b32 v{32+i}, v{36+i}")
    for i in range(4):
        a(f"v_add_f32 v{32+i}, v{32+i}, v{36+i}")
    a("s_nop 1")
    for i in range(2):
        a(f"v_permlane16_swap_b32 v{32+i}, v{34+i}")
    for i in range(2):
        a(f"v_add_f32 v{32+i}, v{32+i}, v{34+i}")
    a("""
    v_lshrrev_b32 v4, 6, v0
    v_lshlrev_b32 v4, 8, v4
    v_lshl_add_u32 v4, v1, 5, v4
    v_bfe_u32 v5, v0, 4, 2
    v_lshl_add_u32 v4, v5, 3, v4
    ds_write_b64 v4, v[32:33] offset:4096
    s_waitcnt lgkmcnt(0)
    s_barrier
    v_cmp_gt_u32 vcc, 64, v0
    s_and_saveexec_b64 s[60:61], vcc
    s_cbranch_execz L_wo_end
    v_lshlrev_b32 v4, 2, v0
    """)
    for w in range(16):
        a(f"ds_read_b32 v{8+w}, v4 offset:{4096+w*256}")
    a("s_waitcnt lgkmcnt(0)")
    for w in range(1, 16):
        a(f"v_add_f32 v8, v8, v{8+w}")
    a(f"""
    s_lshl_b32 s62, s58, 1
    s_add_u32 s62, s62, s59
    s_mul_i32 s62, s62, 1792
    s_lshl_b32 s63, s56, 8
    s_add_u32 s62, s62, s63
    v_add_u32 v4, s62, v4
    v_add_u32 v4, {WS_ATT}, v4
    global_store_dword v4, v8, s[42:43]
L_wo_end:
    s_or_b64 exec, exec, s[60:61]
    """)

def x1_phase(a):
    a(f"""
    s_mul_i32 s61, s60, 896
    v_lshl_add_u32 v2, v1, 1, s61
    s_mul_i32 s61, s60, {2688*4}
    v_lshl_add_u32 v3, v1, 2, s61
    v_add_u32 v3, {WS_MOD + 2*448*4}, v3
    s_mul_i32 s61, s60, 1792
    v_lshl_add_u32 v4, v1, 2, s61
    v_add_u32 v4, {WS_ATT}, v4
    """)
    for i in range(7):
        a(f"global_load_ushort v{8+i}, v2, s[16:17] offset:{i*128}")
    for i in range(7):
        a(f"global_load_dword v{16+i}, v3, s[42:43] offset:{i*256}")
    zero(a, 33, 7)
    for hh in range(4):
        for h in range(4):
            for i in range(7):
                a(f"global_load_dword v{96+h*7+i}, v4, s[42:43] offset:{i*256}")
            a("v_add_u32 v4, 3584, v4")
        a("s_waitcnt vmcnt(0)")
        for h in range(4):
            for i in range(7):
                a(f"v_add_f32 v{33+i}, v{33+i}, v{96+h*7+i}")
    for i in range(7):
        rnd_bf16(a, 33+i, 5)
        a(f"v_mul_f32 v{33+i}, v{33+i}, v{16+i}")
        rnd_bf16(a, 33+i, 5)
        a(f"v_lshlrev_b32 v{8+i}, 16, v{8+i}")
        a(f"v_add_f32 v{8+i}, v{8+i}, v{33+i}")
        rnd_bf16(a, 8+i, 5)

def k_gu(a):
    prologue(a, 28)
    a("""
    v_and_b32 v1, 7, v0
    v_lshrrev_b32 v2, 3, v0
    v_mul_u32_u24 v3, 3584, v2
    v_lshl_add_u32 v3, v1, 4, v3
    v_mov_b32 v62, v1
    v_mov_b32 v63, v2
    s_lshl_b32 s56, s2, 7
    s_add_u32 s57, s56, 458752
    s_add_u32 s58, s57, 458752
    s_add_u32 s59, s58, 458752
    v_lshrrev_b32 v7, 6, v0
    s_nop 0
    v_readfirstlane_b32 s60, v7
    s_waitcnt lgkmcnt(0)
    """)
    srd(a, 44, 28, 448*3584)
    srd(a, 48, 30, 448*3584)
    for i in range(4):
        a(f"buffer_load_dwordx4 {vr(64+4*i,4)}, v3, s[44:47], s{56+i} offen")
        a(f"buffer_load_dwordx4 {vr(80+4*i,4)}, v3, s[48:51], s{56+i} offen")
    a("""
    v_mov_b32 v5, 0
    v_lshlrev_b32 v6, 2, v0
    v_cmp_le_u32 vcc, 896, v0
    s_and_saveexec_b64 s[62:63], vcc
    ds_write_b32 v6, v5
    s_mov_b64 exec, s[62:63]
    s_cmp_ge_u32 s60, 2
    s_cbranch_scc1 L_gu_skipln
    v_and_b32 v1, 63, v0
    """)
    x1_phase(a)
    a(f"""
    s_mul_i32 s61, s60, {2688*4}
    v_lshl_add_u32 v3, v1, 2, s61
    """)
    a(f"v_add_u32 v3, {WS_MOD + 3*448*4}, v3")
    for i in range(7):
        a(f"global_load_dword v{16+i}, v3, s[42:43] offset:{i*256}")
    for i in range(7):
        a(f"global_load_dword v{23+i}, v3, s[42:43] offset:{1792+i*256}")
    a(f"""
    v_lshlrev_b32 v{16+14+7}, 3, v1
    s_lshl_b32 s61, s60, 2
    v_add_u32 v{16+14+7}, s61, v{16+14+7}
    s_waitcnt vmcnt(0)
    """)
    ln_phase(a, 8, 3, 4, 0, 16)
    a("""
L_gu_skipln:
    s_waitcnt lgkmcnt(0)
    s_barrier
    v_lshlrev_b32 v4, 3, v63
    ds_read_b64 v[24:25], v4
    ds_read_b64 v[26:27], v4 offset:1024
    ds_read_b64 v[28:29], v4 offset:2048
    ds_read_b64 v[30:31], v4 offset:3072
    """)
    zero(a, 96, 32)
    a("s_waitcnt vmcnt(0) lgkmcnt(0)")
    for i in range(4):
        fma_tile(a, 64+4*i, 96, 24+2*i, 25+2*i, 48)
        fma_tile(a, 80+4*i, 112, 24+2*i, 25+2*i, 48)
    a("s_nop 1")
    for i in range(32):
        a(f"v_add_f32_dpp v{96+i}, v{96+i}, v{96+i} row_ror:8 row_mask:0xf bank_mask:0xf")
    swap_reduce16(a, 96)
    swap_reduce16(a, 112)
    a("""
    v_lshrrev_b32 v4, 6, v0
    v_lshlrev_b32 v4, 9, v4
    v_lshl_add_u32 v4, v62, 6, v4
    v_bfe_u32 v5, v0, 4, 2
    v_lshl_add_u32 v4, v5, 4, v4
    ds_write_b128 v4, v[96:99] offset:4096
    ds_write_b128 v4, v[112:115] offset:12288
    s_waitcnt lgkmcnt(0)
    s_barrier
    v_cmp_gt_u32 vcc, 128, v0
    s_and_saveexec_b64 s[60:61], vcc
    s_cbranch_execz L_gu_end
    v_lshlrev_b32 v4, 2, v0
    """)
    for w in range(16):
        a(f"ds_read_b32 v{8+w}, v4 offset:{4096+w*512}")
        a(f"ds_read_b32 v{32+w}, v4 offset:{12288+w*512}")
    a("s_waitcnt lgkmcnt(0)")
    for w in range(1, 16):
        a(f"v_add_f32 v8, v8, v{8+w}")
        a(f"v_add_f32 v32, v32, v{32+w}")
    rnd_bf16(a, 8, 9)
    rnd_bf16(a, 32, 9)
    a("""
    v_mul_f32 v9, v8, v8
    v_mul_f32 v9, v9, v8
    v_mov_b32 v10, 0x3d372713
    v_fma_f32 v9, v9, v10, v8
    v_mul_f32 v9, 0x40135761, v9    ; 2*0.7978845608*log2e = 2.3022082
    v_exp_f32 v9, v9
    s_nop 0
    v_add_f32 v9, 1.0, v9
    v_rcp_f32 v9, v9
    s_nop 0
    v_fma_f32 v9, v9, -2.0, 1.0     ; tanh
    v_add_f32 v9, 1.0, v9
    v_mul_f32 v9, 0.5, v9
    v_mul_f32 v9, v9, v8
    """)
    rnd_bf16(a, 9, 10)
    a("v_mul_f32 v9, v9, v32")
    rnd_bf16(a, 9, 10)
    a(f"""
    v_lshrrev_b32 v4, 4, v0
    v_lshlrev_b32 v4, 3, v4
    v_and_b32 v5, 7, v0
    v_add_u32 v4, v4, v5
    v_bfe_u32 v5, v0, 3, 1
    v_mul_u32_u24 v5, 1792, v5
    v_add_u32 v4, v4, v5
    v_lshlrev_b32 v4, 2, v4
    s_lshl_b32 s56, s2, 8
    v_add_u32 v4, s56, v4
    v_add_u32 v4, {WS_ACT}, v4
    global_store_dword v4, v9, s[42:43]
L_gu_end:
    s_or_b64 exec, exec, s[60:61]
    """)

def k_down(a):
    prologue(a, 28)
    a("""
    v_and_b32 v62, 1, v0         ; cg
    v_lshrrev_b32 v63, 1, v0     ; rg 0..511
    v_mul_u32_u24 v3, 896, v63
    v_lshl_add_u32 v3, v62, 4, v3
    s_lshl_b32 s56, s2, 5
    s_add_u32 s57, s56, 458752
    s_add_u32 s58, s57, 458752
    s_add_u32 s59, s58, 458752
    v_lshrrev_b32 v7, 6, v0
    s_nop 0
    v_readfirstlane_b32 s60, v7
    s_waitcnt lgkmcnt(0)
    """)
    srd(a, 44, 32, 1792*896)
    for i in range(4):
        a(f"buffer_load_dwordx4 {vr(64+4*i,4)}, v3, s[44:47], s{56+i} offen")
    a(f"""
    v_lshlrev_b32 v4, 2, v0
    v_add_u32 v4, {WS_ACT}, v4
    v_mov_b32 v26, 0
    v_mov_b32 v27, 0
    global_load_dword v24, v4, s[42:43]
    v_add_u32 v5, 7168, v4
    global_load_dword v25, v5, s[42:43]
    v_cmp_gt_u32 vcc, 768, v0
    s_and_saveexec_b64 s[62:63], vcc
    v_add_u32 v6, 4096, v4
    v_add_u32 v7, 4096, v5
    global_load_dword v26, v6, s[42:43]
    global_load_dword v27, v7, s[42:43]
    s_mov_b64 exec, s[62:63]
    v_lshlrev_b32 v4, 3, v0
    s_waitcnt vmcnt(0)
    ds_write_b64 v4, v[24:25]
    ds_write_b64 v4, v[26:27] offset:8192
    s_cmp_ge_u32 s60, 2
    s_cbranch_scc1 L_dn_skip
    v_and_b32 v1, 63, v0
    """)
    x1_phase(a)
    a(f"""
    s_mul_i32 s61, s60, {2688*4}
    v_lshl_add_u32 v3, v1, 2, s61
    """)
    a(f"v_add_u32 v3, {WS_MOD + 5*448*4}, v3")
    for i in range(7):
        a(f"global_load_dword v{16+i}, v3, s[42:43] offset:{i*256}")
    a(f"""
    s_mul_i32 s61, s60, 1792
    v_lshl_add_u32 v3, v1, 2, s61
    s_waitcnt vmcnt(0)
    """)
    for i in range(7):
        a(f"ds_write_b32 v3, v{8+i} offset:{32768+i*256}")
        a(f"ds_write_b32 v3, v{16+i} offset:{36864+i*256}")
    a("""
L_dn_skip:
    s_waitcnt lgkmcnt(0)
    s_barrier
    v_lshlrev_b32 v4, 3, v63
    ds_read_b64 v[24:25], v4
    ds_read_b64 v[26:27], v4 offset:4096
    ds_read_b64 v[28:29], v4 offset:8192
    ds_read_b64 v[30:31], v4 offset:12288
    """)
    zero(a, 32, 16)
    a("s_waitcnt vmcnt(0) lgkmcnt(0)")
    for i in range(4):
        fma_tile(a, 64+4*i, 32, 24+2*i, 25+2*i, 48)
    a("s_nop 1")
    for m in ["quad_perm:[2,3,0,1]", "row_ror:4", "row_ror:8"]:
        for i in range(16):
            a(f"v_add_f32_dpp v{32+i}, v{32+i}, v{32+i} {m} row_mask:0xf bank_mask:0xf")
        a("s_nop 1")
    swap_reduce16(a, 32)
    a("""
    v_lshrrev_b32 v4, 6, v0
    v_lshlrev_b32 v4, 7, v4
    v_lshl_add_u32 v4, v62, 6, v4
    v_bfe_u32 v7, v0, 4, 2
    v_lshl_add_u32 v4, v7, 4, v4
    ds_write_b128 v4, v[32:35] offset:16384
    s_waitcnt lgkmcnt(0)
    s_barrier
    v_cmp_gt_u32 vcc, 32, v0
    s_and_saveexec_b64 s[60:61], vcc
    s_cbranch_execz L_dn_end
    v_lshlrev_b32 v4, 2, v0
    """)
    for w in range(16):
        a(f"ds_read_b32 v{8+w}, v4 offset:{16384+w*128}")
    a("""
    v_lshrrev_b32 v4, 4, v0
    v_lshlrev_b32 v4, 3, v4
    v_and_b32 v5, 7, v0
    v_add_u32 v4, v4, v5
    s_lshl_b32 s56, s2, 4
    v_add_u32 v4, s56, v4
    v_bfe_u32 v5, v0, 3, 1
    v_mul_u32_u24 v5, 448, v5
    v_add_u32 v4, v4, v5         ; b*448+col
    v_lshlrev_b32 v5, 2, v4
    ds_read_b32 v30, v5 offset:32768
    ds_read_b32 v31, v5 offset:36864
    s_waitcnt lgkmcnt(0)
    """)
    for w in range(1, 16):
        a(f"v_add_f32 v8, v8, v{8+w}")
    rnd_bf16(a, 8, 9)
    a("v_mul_f32 v8, v8, v31")
    rnd_bf16(a, 8, 9)
    a("""
    v_add_f32 v8, v8, v30
    v_cvt_pk_bf16_f32 v8, v8, v8
    v_lshlrev_b32 v4, 1, v4
    global_store_short v4, v8, s[38:39]
L_dn_end:
    s_or_b64 exec, exec, s[60:61]
    """)

KERNELS = [("mod_kernel", k_mod, 42, 16384), ("q_kernel", k_q, 256, 8192), ("att_kernel", k_att, 256, 16384+256),
           ("wo_kernel", k_wo, 256, 8192+4096), ("gu_kernel", k_gu, 28, 20480), ("down_kernel", k_down, 28, 40960)]

def main():
    hdr = open("cdna_kernels/" + NAME + ".s.ref").read().split("\n")
    out = []
    for l in hdr:
        if l.startswith("; Override") or l.startswith("; grid=") or l.startswith("; @launch") or l.startswith(".amdgcn"):
            break
        out.append(l)
    for k, f, g, lds in KERNELS:
        out.append(f"; @launch kernel={k} grid=({g},1,1) block=(1024,1,1) lds={lds}")
    out.append('.amdgcn_target "amdgcn-amd-amdhsa--gfx950"')
    out.append(".text")
    body = []
    for k, f, g, lds in KERNELS:
        a = Asm(); a.kname = k
        f(a)
        body.append(f".globl {k}\n.p2align 8\n.type {k},@function\n{k}:\n" + a.text() + f"L_exit_{k}:\n    s_endpgm\n")
    out.append("\n".join(body))
    out.append('.section .rodata,"a"')
    for k, f, g, lds in KERNELS:
        out.append(f""".p2align 6
.amdhsa_kernel {k}
  .amdhsa_next_free_vgpr 128
  .amdhsa_next_free_sgpr 102
  .amdhsa_accum_offset 128
  .amdhsa_group_segment_fixed_size 0
  .amdhsa_kernarg_size 112
  .amdhsa_user_sgpr_count 2
  .amdhsa_user_sgpr_kernarg_segment_ptr 1
  .amdhsa_system_sgpr_workgroup_id_x 1
.end_amdhsa_kernel""")
    open("cdna_kernels/" + NAME + ".s", "w").write("\n".join(out) + "\n")

if __name__ == '__main__':
    main()
```

```python
import sys
from asmlib import *

NAME = "adaLN_cond__mha_block_cached__geglu_ffn__decode"
LOG2E = "0x3fb8aa3b"

WS_MOD  = 0x00000
WS_Q    = 0x08000
WS_PART = 0x10000
WS_ML   = 0x50000
WS_ATT  = 0x60000
WS_ACT  = 0x80000

def prologue(a, nwg):
    a(f"""
    s_cmp_ge_u32 s2, {nwg}
    s_cbranch_scc1 L_exit_{a.kname}
    s_load_dwordx16 s[16:31], s[0:1], 0
    s_load_dwordx8 s[32:39], s[0:1], 64
    s_load_dwordx4 s[40:43], s[0:1], 96
    """)

def srd(a, s, ptr, size):
    a(f"""
    s_mov_b32 s{s}, s{ptr}
    s_and_b32 s{s+1}, s{ptr+1}, 0xffff
    s_mov_b32 s{s+2}, {size}
    s_mov_b32 s{s+3}, 0x00020000
    """)

def rnd_bf16(a, v, t):
    a(f"""
    v_cvt_pk_bf16_f32 v{t}, v{v}, v{v}
    v_lshlrev_b32 v{v}, 16, v{t}
    """)

def wave_allsum(a, v, t):
    a(f"""
    s_nop 1
    v_add_f32_dpp v{v}, v{v}, v{v} quad_perm:[1,0,3,2] row_mask:0xf bank_mask:0xf
    s_nop 1
    v_add_f32_dpp v{v}, v{v}, v{v} quad_perm:[2,3,0,1] row_mask:0xf bank_mask:0xf
    s_nop 1
    v_add_f32_dpp v{v}, v{v}, v{v} row_half_mirror row_mask:0xf bank_mask:0xf
    s_nop 1
    v_add_f32_dpp v{v}, v{v}, v{v} row_mirror row_mask:0xf bank_mask:0xf
    v_mov_b32 v{t}, v{v}
    s_nop 1
    v_permlane16_swap_b32 v{v}, v{t}
    v_add_f32 v{v}, v{v}, v{t}
    v_mov_b32 v{t}, v{v}
    s_nop 1
    v_permlane32_swap_b32 v{v}, v{t}
    v_add_f32 v{v}, v{v}, v{t}
    """)

def fma_tile(a, w, acc, av0, av1, t):
    for d in range(4):
        a(f"""
        v_lshlrev_b32 v{t}, 16, v{w+d}
        v_and_b32 v{t+1}, 0xffff0000, v{w+d}
        v_fmac_f32 v{acc+2*d}, v{av0}, v{t}
        v_fmac_f32 v{acc+2*d+1}, v{av0}, v{t+1}
        v_fmac_f32 v{acc+8+2*d}, v{av1}, v{t}
        v_fmac_f32 v{acc+8+2*d+1}, v{av1}, v{t+1}
        """)

def swap_reduce16(a, acc):
    a("s_nop 1")
    for i in range(8):
        a(f"v_permlane32_swap_b32 v{acc+i}, v{acc+i+8}")
    for i in range(8):
        a(f"v_add_f32 v{acc+i}, v{acc+i}, v{acc+i+8}")
    a("s_nop 1")
    for i in range(4):
        a(f"v_permlane16_swap_b32 v{acc+i}, v{acc+i+4}")
    for i in range(4):
        a(f"v_add_f32 v{acc+i}, v{acc+i}, v{acc+i+4}")

def zero(a, r, n):
    for i in range(n):
        a(f"v_mov_b32 v{r+i}, 0")

def ln_phase(a, xsrc_regs, modoff_shift, modoff_scale, lds_base, tmp):
    xs = xsrc_regs
    T = tmp + 14
    a(f"v_add_f32 v{T}, v{xs}, v{xs+1}")
    for i in range(2, 7):
        a(f"v_add_f32 v{T}, v{T}, v{xs+i}")
    wave_allsum(a, T, T+1)
    a(f"v_mul_f32 v{T}, 0x3b124925, v{T}")
    a(f"v_sub_f32 v{T+2}, v{xs}, v{T}")
    a(f"v_mul_f32 v{T+3}, v{T+2}, v{T+2}")
    for i in range(1, 7):
        a(f"v_sub_f32 v{T+2}, v{xs+i}, v{T}")
        a(f"v_fmac_f32 v{T+3}, v{T+2}, v{T+2}")
    wave_allsum(a, T+3, T+1)
    a(f"v_mul_f32 v{T+3}, 0x3b124925, v{T+3}")
    rnd_bf16(a, T, T+1)
    rnd_bf16(a, T+3, T+1)
    a(f"v_add_f32 v{T+3}, 0x3727c5ac, v{T+3}")
    rnd_bf16(a, T+3, T+1)
    a(f"v_sqrt_f32 v{T+3}, v{T+3}")
    a("s_nop 0")
    rnd_bf16(a, T+3, T+1)
    a(f"v_rcp_f32 v{T+4}, v{T+3}")
    a("s_nop 0")
    for i in range(7):
        d = T+2
        a(f"v_sub_f32 v{d}, v{xs+i}, v{T}")
        rnd_bf16(a, d, T+1)
        a(f"v_mul_f32 v{T+5}, v{d}, v{T+4}")
        a(f"v_fma_f32 v{T+6}, -v{T+5}, v{T+3}, v{d}")
        a(f"v_fmac_f32 v{T+5}, v{T+6}, v{T+4}")
        rnd_bf16(a, T+5, T+1)
        a(f"v_add_f32 v{T+6}, 1.0, v{tmp+7+i}")
        rnd_bf16(a, T+6, T+1)
        a(f"v_mul_f32 v{T+5}, v{T+5}, v{T+6}")
        rnd_bf16(a, T+5, T+1)
        a(f"v_add_f32 v{T+5}, v{T+5}, v{tmp+i}")
        rnd_bf16(a, T+5, T+1)
        a(f"ds_write_b32 v{T+7}, v{T+5} offset:{lds_base + i*512}")

def k_mod(a):
    prologue(a, 42)
    a("""
    v_and_b32 v1, 7, v0
    v_lshrrev_b32 v2, 3, v0
    v_mul_u32_u24 v3, 5376, v2
    v_lshl_add_u32 v3, v1, 4, v3
    s_lshl_b32 s56, s2, 7
    s_add_u32 s57, s56, 688128
    s_add_u32 s58, s57, 688128
    s_add_u32 s59, s58, 688128
    s_waitcnt lgkmcnt(0)
    """)
    srd(a, 44, 36, 448*5376)
    a("""
    buffer_load_dwordx4 v[8:11], v3, s[44:47], s56 offen
    buffer_load_dwordx4 v[12:15], v3, s[44:47], s57 offen
    buffer_load_dwordx4 v[16:19], v3, s[44:47], s58 offen
    buffer_load_dwordx4 v[20:23], v3, s[44:47], s59 offen
    ; silu(c)
    v_mov_b32 v5, 0
    v_lshlrev_b32 v6, 2, v0
    v_cmp_gt_u32 vcc, 896, v0
    s_and_saveexec_b64 s[60:61], vcc
    s_cbranch_execz L_mod_noc
    v_lshlrev_b32 v4, 1, v0
    global_load_ushort v5, v4, s[34:35]
    v_cmp_le_u32 vcc, 448, v0
    v_cndmask_b32 v6, 0, 1, vcc      ; b
    v_mul_u32_u24 v7, 448, v6
    v_sub_u32 v7, v0, v7             ; k
    v_lshl_add_u32 v6, v7, 1, v6     ; k*2+b
    v_lshlrev_b32 v6, 2, v6
    s_waitcnt vmcnt(0)
    v_lshlrev_b32 v5, 16, v5
    v_mul_f32 v7, 0xbfb8aa3b, v5
    v_exp_f32 v7, v7
    s_nop 0
    v_add_f32 v7, 1.0, v7
    v_rcp_f32 v7, v7
    s_nop 0
    v_mul_f32 v5, v5, v7
    """)
    rnd_bf16(a, 5, 7)
    a("""
L_mod_noc:
    s_or_b64 exec, exec, s[60:61]
    ds_write_b32 v6, v5
    s_waitcnt lgkmcnt(0)
    s_barrier
    v_lshlrev_b32 v4, 3, v2
    ds_read_b64 v[24:25], v4
    ds_read_b64 v[26:27], v4 offset:1024
    ds_read_b64 v[28:29], v4 offset:2048
    ds_read_b64 v[30:31], v4 offset:3072
    """)
    zero(a, 32, 16)
    a("s_waitcnt vmcnt(0) lgkmcnt(0)")
    for i in range(4):
        fma_tile(a, 8+4*i, 32, 24+2*i, 25+2*i, 48)
    a("s_nop 1")
    for i in range(16):
        a(f"v_add_f32_dpp v{32+i}, v{32+i}, v{32+i} row_ror:8 row_mask:0xf bank_mask:0xf")
    swap_reduce16(a, 32)
    a("""
    v_lshrrev_b32 v4, 6, v0
    v_lshlrev_b32 v4, 9, v4
    v_lshl_add_u32 v4, v1, 6, v4
    v_bfe_u32 v5, v0, 4, 2
    v_lshl_add_u32 v4, v5, 4, v4
    ds_write_b128 v4, v[32:35] offset:4096
    s_waitcnt lgkmcnt(0)
    s_barrier
    v_cmp_gt_u32 vcc, 128, v0
    s_and_saveexec_b64 s[60:61], vcc
    s_cbranch_execz L_mod_end
    v_lshlrev_b32 v4, 2, v0
    """)
    for w in range(16):
        a(f"ds_read_b32 v{8+w}, v4 offset:{4096+w*512}")
    a("s_waitcnt lgkmcnt(0)")
    for w in range(1, 16):
        a(f"v_add_f32 v8, v8, v{8+w}")
    rnd_bf16(a, 8, 9)
    a(f"""
    v_lshrrev_b32 v4, 4, v0
    v_lshlrev_b32 v4, 3, v4
    v_and_b32 v5, 7, v0
    v_add_u32 v4, v4, v5
    v_bfe_u32 v5, v0, 3, 1
    v_mul_u32_u24 v5, 2688, v5
    v_add_u32 v4, v4, v5
    v_lshlrev_b32 v4, 2, v4
    s_lshl_b32 s56, s2, 8
    v_add_u32 v4, s56, v4
    global_store_dword v4, v8, s[42:43] offset:{WS_MOD}
L_mod_end:
    s_or_b64 exec, exec, s[60:61]
    """)

def load_x_mod(a, shift_idx, scale_idx):
    a(f"""
    s_mul_i32 s61, s60, 896
    v_lshl_add_u32 v2, v1, 1, s61
    s_mul_i32 s61, s60, {2688*4}
    v_lshl_add_u32 v3, v1, 2, s61
    """)
    for i in range(7):
        a(f"global_load_ushort v{8+i}, v2, s[16:17] offset:{i*128}")
    a(f"v_add_u32 v4, {WS_MOD + shift_idx*448*4}, v3")
    a(f"v_add_u32 v3, {WS_MOD + scale_idx*448*4}, v3")
    for i in range(7):
        a(f"global_load_dword v{16+i}, v4, s[42:43] offset:{i*256}")
    for i in range(7):
        a(f"global_load_dword v{23+i}, v3, s[42:43] offset:{i*256}")

def k_q(a):
    prologue(a, 256)
    a("""
    s_lshr_b32 s56, s2, 4       ; head
    s_and_b32 s57, s2, 15       ; i
    s_lshl_b32 s58, s56, 9
    s_lshl_b32 s59, s57, 5
    s_add_u32 s58, s58, s59
    v_lshrrev_b32 v4, 1, v0     ; row
    v_and_b32 v5, 1, v0         ; cg
    v_lshlrev_b32 v6, 13, v4
    v_lshl_add_u32 v6, v5, 4, v6
    v_and_b32 v1, 63, v0
    v_lshrrev_b32 v7, 6, v0
    s_nop 0
    v_readfirstlane_b32 s60, v7
    s_waitcnt lgkmcnt(0)
    """)
    srd(a, 44, 22, 448*8192)
    a("""
    buffer_load_dwordx4 v[40:43], v6, s[44:47], s58 offen
    s_cmp_ge_u32 s60, 2
    s_cbranch_scc1 L_q_skipln
    """)
    load_x_mod(a, 0, 1)
    a("s_waitcnt vmcnt(0)")
    for i in range(7):
        a(f"v_lshlrev_b32 v{8+i}, 16, v{8+i}")
    a(f"""
    v_lshlrev_b32 v{16+14+7}, 3, v1
    s_lshl_b32 s61, s60, 2
    v_add_u32 v{16+14+7}, s61, v{16+14+7}
    """)
    ln_phase(a, 8, 0, 1, 0, 16)
    a(f"""
L_q_skipln:
    s_waitcnt lgkmcnt(0)
    s_barrier
    v_lshrrev_b32 v4, 1, v0
    v_min_u32 v4, 447, v4
    v_lshlrev_b32 v7, 3, v4
    ds_read_b64 v[44:45], v7
    """)
    zero(a, 48, 16)
    a("s_waitcnt vmcnt(0) lgkmcnt(0)")
    fma_tile(a, 40, 48, 44, 45, 46)
    a("s_nop 1")
    for m in ["quad_perm:[2,3,0,1]", "row_ror:4", "row_ror:8"]:
        for i in range(16):
            a(f"v_add_f32_dpp v{48+i}, v{48+i}, v{48+i} {m} row_mask:0xf bank_mask:0xf")
        a("s_nop 1")
    swap_reduce16(a, 48)
    a(f"""
    v_lshrrev_b32 v4, 6, v0
    v_lshlrev_b32 v4, 7, v4
    v_lshl_add_u32 v4, v5, 6, v4
    v_bfe_u32 v7, v0, 4, 2
    v_lshl_add_u32 v4, v7, 4, v4
    ds_write_b128 v4, v[48:51] offset:4096
    s_waitcnt lgkmcnt(0)
    s_barrier
    v_cmp_gt_u32 vcc, 32, v0
    s_and_saveexec_b64 s[60:61], vcc
    s_cbranch_execz L_q_end
    v_lshlrev_b32 v4, 2, v0
    """)
    for w in range(14):
        a(f"ds_read_b32 v{8+w}, v4 offset:{4096+w*128}")
    a("s_waitcnt lgkmcnt(0)")
    for w in range(1, 14):
        a(f"v_add_f32 v8, v8, v{8+w}")
    a(f"""
    v_cvt_pk_bf16_f32 v8, v8, v8
    v_lshrrev_b32 v4, 4, v0
    v_lshlrev_b32 v4, 3, v4
    v_and_b32 v5, 7, v0
    v_add_u32 v4, v4, v5
    v_bfe_u32 v5, v0, 3, 1
    v_lshl_add_u32 v4, v5, 12, v4
    v_lshlrev_b32 v4, 1, v4
    v_add_u32 v4, s58, v4
    v_add_u32 v4, {WS_Q}, v4
    global_store_short v4, v8, s[42:43]
L_q_end:
    s_or_b64 exec, exec, s[60:61]
    """)

def k_att(a):
    prologue(a, 256)
    a("""
    v_and_b32 v1, 63, v0
    v_lshrrev_b32 v2, 6, v0      ; wave
    v_lshlrev_b32 v3, 14, v2
    v_lshl_add_u32 v3, v1, 4, v3
    s_lshl_b32 s56, s2, 18       ; wg*262144
    s_waitcnt lgkmcnt(0)
    s_add_u32 s44, s18, s56
    s_addc_u32 s45, s19, 0
    s_add_u32 s46, s20, s56
    s_addc_u32 s47, s21, 0
    """)
    KR = 32
    for t in range(16):
        a(f"global_load_dwordx4 {vr(KR+4*t,4)}, v3, s[44:45] offset:{t*1024 - (0 if t<4 else 0)}" if t < 4 else "")
    a("""
    v_add_u32 v4, 0x1000, v3
    v_add_u32 v5, 0x2000, v3
    v_add_u32 v6, 0x3000, v3
    """)
    for t in range(4, 16):
        a(f"global_load_dwordx4 {vr(KR+4*t,4)}, v{3 + t//4}, s[44:45] offset:{(t%4)*1024}")
    a(f"""
    s_lshr_b32 s57, s2, 3
    s_lshl_b32 s57, s57, 9
    v_and_b32 v7, 31, v1
    v_lshl_add_u32 v7, v7, 4, s57
    v_add_u32 v7, {WS_Q}, v7
    global_load_dwordx4 v[8:11], v7, s[42:43]
    """)
    a("s_waitcnt vmcnt(0)")
    for t in range(16):
        k = KR + 4*t
        a(f"v_dot2_f32_bf16 v{12+t}, v{k}, v8, 0")
        for d in range(1, 4):
            a(f"v_dot2_f32_bf16 v{12+t}, v{k+d}, v{8+d}, v{12+t}")
        a(f"global_load_dwordx4 {vr(k,4)}, v{3 + t//4}, s[46:47] offset:{(t%4)*1024}")
    a("s_nop 1")
    for m in ["quad_perm:[1,0,3,2]", "quad_perm:[2,3,0,1]", "row_half_mirror", "row_mirror"]:
        for t in range(16):
            a(f"v_add_f32_dpp v{12+t}, v{12+t}, v{12+t} {m} row_mask:0xf bank_mask:0xf")
        a("s_nop 1")
    for t in range(16):
        a(f"v_mov_b32 v{96+t}, v{12+t}")
    a("s_nop 1")
    for t in range(16):
        a(f"v_permlane16_swap_b32 v{12+t}, v{96+t}")
    for t in range(16):
        a(f"v_add_f32 v{12+t}, v{12+t}, v{96+t}")
    for t in range(16):
        rnd_bf16(a, 12+t, 28)
    a("s_mov_b32 s58, 0x3db8aa3b")
    for t in range(16):
        a(f"v_mul_f32 v{12+t}, s58, v{12+t}")
    a("v_max_f32 v28, v12, v13")
    for t in range(2, 16):
        a(f"v_max_f32 v28, v28, v{12+t}")
    a("""
    v_mov_b32 v29, v28
    s_nop 1
    v_permlane32_swap_b32 v28, v29
    v_max_f32 v28, v28, v29
    """)
    for t in range(16):
        a(f"v_sub_f32 v{12+t}, v{12+t}, v28")
        a(f"v_exp_f32 v{12+t}, v{12+t}")
    a("s_nop 0")
    a("v_add_f32 v29, v12, v13")
    for t in range(2, 16):
        a(f"v_add_f32 v29, v29, v{12+t}")
    a("""
    v_mov_b32 v30, v29
    s_nop 1
    v_permlane32_swap_b32 v29, v30
    v_add_f32 v29, v29, v30
    """)
    zero(a, 96, 8)
    for t in range(16):
        k = KR + 4*t
        a(f"s_waitcnt vmcnt({15-t})")
        for d in range(4):
            a(f"""
            v_lshlrev_b32 v104, 16, v{k+d}
            v_and_b32 v105, 0xffff0000, v{k+d}
            v_fmac_f32 v{96+2*d}, v{12+t}, v104
            v_fmac_f32 v{96+2*d+1}, v{12+t}, v105
            """)
    a("s_nop 1")
    for i in range(4):
        a(f"v_permlane32_swap_b32 v{96+i}, v{100+i}")
    for i in range(4):
        a(f"v_add_f32 v{96+i}, v{96+i}, v{100+i}")
    a("""
    v_and_b32 v4, 31, v1
    v_lshlrev_b32 v4, 5, v4
    v_lshrrev_b32 v5, 5, v1
    v_lshl_add_u32 v4, v5, 4, v4
    v_lshl_add_u32 v4, v2, 10, v4
    ds_write_b128 v4, v[96:99]
    v_lshlrev_b32 v5, 3, v2
    ds_write_b64 v5, v[28:29] offset:16384
    s_waitcnt lgkmcnt(0)
    s_barrier
    v_cmp_gt_u32 vcc, 256, v0
    s_and_saveexec_b64 s[60:61], vcc
    s_cbranch_execz L_att_end
    v_mov_b32 v5, 0
    """)
    for w in range(8):
        a(f"ds_read_b128 {vr(32+4*w,4)}, v5 offset:{16384+16*w}")
    a("v_lshlrev_b32 v4, 2, v0")
    for w in range(16):
        a(f"ds_read_b32 v{64+w}, v4 offset:{w*1024}")
    a("s_waitcnt lgkmcnt(0)")
    a("v_max_f32 v8, v32, v34")
    for w in range(2, 16):
        a(f"v_max_f32 v8, v8, v{32+2*w}")
    zero(a, 9, 2)
    for w in range(16):
        a(f"""
        v_sub_f32 v11, v{32+2*w}, v8
        v_exp_f32 v11, v11
        s_nop 0
        v_fmac_f32 v9, v11, v{33+2*w}
        v_fmac_f32 v10, v11, v{64+w}
        """)
    a(f"""
    s_lshl_b32 s56, s2, 10
    v_add_u32 v4, s56, v4
    v_add_u32 v4, {WS_PART}, v4
    global_store_dword v4, v10, s[42:43]
    v_cmp_eq_u32 vcc, 0, v0
    s_and_saveexec_b64 s[62:63], vcc
    s_lshl_b32 s56, s2, 3
    v_mov_b32 v4, s56
    v_add_u32 v4, {WS_ML}, v4
    global_store_dwordx2 v4, v[8:9], s[42:43]
L_att_end:
    s_mov_b64 exec, -1
    """)

def k_wo(a):
    prologue(a, 256)
    a("""
    s_and_b32 s56, s2, 7
    s_cmp_eq_u32 s56, 7
    s_cbranch_scc1 L_exit_wo_kernel
    s_lshr_b32 s57, s2, 3        ; bh
    s_and_b32 s58, s57, 15       ; head
    s_lshr_b32 s59, s2, 7        ; b
    v_and_b32 v1, 7, v0          ; cg
    v_lshrrev_b32 v2, 3, v0      ; rg 0..127
    v_mul_u32_u24 v3, 896, v2
    v_lshl_add_u32 v3, v1, 4, v3
    s_mul_i32 s62, s58, 229376   ; head*256*896
    s_lshl_b32 s63, s56, 7
    s_add_u32 s62, s62, s63
    s_add_u32 s63, s62, 114688   ; +128 rows
    s_waitcnt lgkmcnt(0)
    """)
    srd(a, 44, 24, 4096*896)
    a(f"""
    buffer_load_dwordx4 v[8:11], v3, s[44:47], s62 offen
    buffer_load_dwordx4 v[12:15], v3, s[44:47], s63 offen
    v_cmp_gt_u32 vcc, 256, v0
    s_and_saveexec_b64 s[60:61], vcc
    s_cbranch_execz L_wo_nocomb
    s_lshl_b32 s64, s57, 6
    v_mov_b32 v4, s64
    v_add_u32 v4, {WS_ML}, v4
    """)
    for i in range(4):
        a(f"global_load_dwordx4 {vr(32+4*i,4)}, v4, s[42:43] offset:{16*i}")
    a(f"""
    s_lshl_b32 s64, s57, 13      ; bh*8*1024
    v_lshlrev_b32 v4, 2, v0
    v_add_u32 v5, s64, v4
    v_add_u32 v5, {WS_PART}, v5
    v_add_u32 v6, 0x1000, v5
    """)
    for i in range(8):
        a(f"global_load_dword v{48+i}, v{5 + i//4}, s[42:43] offset:{(i%4)*1024}")
    a("s_waitcnt vmcnt(0)")
    a("v_max_f32 v16, v32, v34")
    for w in range(2, 8):
        a(f"v_max_f32 v16, v16, v{32+2*w}")
    zero(a, 17, 2)
    for w in range(8):
        a(f"""
        v_sub_f32 v19, v{32+2*w}, v16
        v_exp_f32 v19, v19
        s_nop 0
        v_fmac_f32 v17, v19, v{33+2*w}
        v_fmac_f32 v18, v19, v{48+w}
        """)
    a("""
    v_rcp_f32 v19, v17
    s_nop 0
    v_mul_f32 v20, v18, v19
    v_fma_f32 v21, -v20, v17, v18
    v_fmac_f32 v20, v21, v19
    """)
    rnd_bf16(a, 20, 21)
    a("""
    ds_write_b32 v4, v20
L_wo_nocomb:
    s_or_b64 exec, exec, s[60:61]
    s_waitcnt lgkmcnt(0)
    s_barrier
    v_lshlrev_b32 v4, 2, v2
    ds_read_b32 v24, v4
    ds_read_b32 v25, v4 offset:512
    """)
    zero(a, 32, 8)
    a("s_waitcnt vmcnt(0) lgkmcnt(0)")
    for i in range(2):
        for d in range(4):
            a(f"""
            v_lshlrev_b32 v26, 16, v{8+4*i+d}
            v_and_b32 v27, 0xffff0000, v{8+4*i+d}
            v_fmac_f32 v{32+2*d}, v{24+i}, v26
            v_fmac_f32 v{32+2*d+1}, v{24+i}, v27
            """)
    a("s_nop 1")
    for i in range(8):
        a(f"v_add_f32_dpp v{32+i}, v{32+i}, v{32+i} row_ror:8 row_mask:0xf bank_mask:0xf")
    a("s_nop 1")
    for i in range(4):
        a(f"v_permlane32_swap_b32 v{32+i}, v{36+i}")
    for i in range(4):
        a(f"v_add_f32 v{32+i}, v{32+i}, v{36+i}")
    a("s_nop 1")
    for i in range(2):
        a(f"v_permlane16_swap_b32 v{32+i}, v{34+i}")
    for i in range(2):
        a(f"v_add_f32 v{32+i}, v{32+i}, v{34+i}")
    a("""
    v_lshrrev_b32 v4, 6, v0
    v_lshlrev_b32 v4, 8, v4
    v_lshl_add_u32 v4, v1, 5, v4
    v_bfe_u32 v5, v0, 4, 2
    v_lshl_add_u32 v4, v5, 3, v4
    ds_write_b64 v4, v[32:33] offset:4096
    s_waitcnt lgkmcnt(0)
    s_barrier
    v_cmp_gt_u32 vcc, 64, v0
    s_and_saveexec_b64 s[60:61], vcc
    s_cbranch_execz L_wo_end
    v_lshlrev_b32 v4, 2, v0
    """)
    for w in range(16):
        a(f"ds_read_b32 v{8+w}, v4 offset:{4096+w*256}")
    a("s_waitcnt lgkmcnt(0)")
    for w in range(1, 16):
        a(f"v_add_f32 v8, v8, v{8+w}")
    a(f"""
    s_lshl_b32 s62, s58, 1
    s_add_u32 s62, s62, s59
    s_mul_i32 s62, s62, 1792
    s_lshl_b32 s63, s56, 8
    s_add_u32 s62, s62, s63
    v_add_u32 v4, s62, v4
    v_add_u32 v4, {WS_ATT}, v4
    global_store_dword v4, v8, s[42:43]
L_wo_end:
    s_or_b64 exec, exec, s[60:61]
    """)

def x1_phase(a):
    a(f"""
    s_mul_i32 s61, s60, 896
    v_lshl_add_u32 v2, v1, 1, s61
    s_mul_i32 s61, s60, {2688*4}
    v_lshl_add_u32 v3, v1, 2, s61
    v_add_u32 v3, {WS_MOD + 2*448*4}, v3
    s_mul_i32 s61, s60, 1792
    v_lshl_add_u32 v4, v1, 2, s61
    v_add_u32 v4, {WS_ATT}, v4
    """)
    for i in range(7):
        a(f"global_load_ushort v{8+i}, v2, s[16:17] offset:{i*128}")
    for i in range(7):
        a(f"global_load_dword v{16+i}, v3, s[42:43] offset:{i*256}")
    zero(a, 33, 7)
    for hh in range(4):
        for h in range(4):
            for i in range(7):
                a(f"global_load_dword v{96+h*7+i}, v4, s[42:43] offset:{i*256}")
            a("v_add_u32 v4, 3584, v4")
        a("s_waitcnt vmcnt(0)")
        for h in range(4):
            for i in range(7):
                a(f"v_add_f32 v{33+i}, v{33+i}, v{96+h*7+i}")
    for i in range(7):
        rnd_bf16(a, 33+i, 5)
        a(f"v_mul_f32 v{33+i}, v{33+i}, v{16+i}")
        rnd_bf16(a, 33+i, 5)
        a(f"v_lshlrev_b32 v{8+i}, 16, v{8+i}")
        a(f"v_add_f32 v{8+i}, v{8+i}, v{33+i}")
        rnd_bf16(a, 8+i, 5)

def k_gu(a):
    prologue(a, 28)
    a("""
    v_and_b32 v1, 7, v0
    v_lshrrev_b32 v2, 3, v0
    v_mul_u32_u24 v3, 3584, v2
    v_lshl_add_u32 v3, v1, 4, v3
    v_mov_b32 v62, v1
    v_mov_b32 v63, v2
    s_lshl_b32 s56, s2, 7
    s_add_u32 s57, s56, 458752
    s_add_u32 s58, s57, 458752
    s_add_u32 s59, s58, 458752
    v_lshrrev_b32 v7, 6, v0
    s_nop 0
    v_readfirstlane_b32 s60, v7
    s_waitcnt lgkmcnt(0)
    """)
    srd(a, 44, 28, 448*3584)
    srd(a, 48, 30, 448*3584)
    for i in range(4):
        a(f"buffer_load_dwordx4 {vr(64+4*i,4)}, v3, s[44:47], s{56+i} offen")
        a(f"buffer_load_dwordx4 {vr(80+4*i,4)}, v3, s[48:51], s{56+i} offen")
    a("""
    v_mov_b32 v5, 0
    v_lshlrev_b32 v6, 2, v0
    v_cmp_le_u32 vcc, 896, v0
    s_and_saveexec_b64 s[62:63], vcc
    ds_write_b32 v6, v5
    s_mov_b64 exec, s[62:63]
    s_cmp_ge_u32 s60, 2
    s_cbranch_scc1 L_gu_skipln
    v_and_b32 v1, 63, v0
    """)
    x1_phase(a)
    a(f"""
    s_mul_i32 s61, s60, {2688*4}
    v_lshl_add_u32 v3, v1, 2, s61
    """)
    a(f"v_add_u32 v3, {WS_MOD + 3*448*4}, v3")
    for i in range(7):
        a(f"global_load_dword v{16+i}, v3, s[42:43] offset:{i*256}")
    for i in range(7):
        a(f"global_load_dword v{23+i}, v3, s[42:43] offset:{1792+i*256}")
    a(f"""
    v_lshlrev_b32 v{16+14+7}, 3, v1
    s_lshl_b32 s61, s60, 2
    v_add_u32 v{16+14+7}, s61, v{16+14+7}
    s_waitcnt vmcnt(0)
    """)
    ln_phase(a, 8, 3, 4, 0, 16)
    a("""
L_gu_skipln:
    s_waitcnt lgkmcnt(0)
    s_barrier
    v_lshlrev_b32 v4, 3, v63
    ds_read_b64 v[24:25], v4
    ds_read_b64 v[26:27], v4 offset:1024
    ds_read_b64 v[28:29], v4 offset:2048
    ds_read_b64 v[30:31], v4 offset:3072
    """)
    zero(a, 96, 32)
    a("s_waitcnt vmcnt(0) lgkmcnt(0)")
    for i in range(4):
        fma_tile(a, 64+4*i, 96, 24+2*i, 25+2*i, 48)
        fma_tile(a, 80+4*i, 112, 24+2*i, 25+2*i, 48)
    a("s_nop 1")
    for i in range(32):
        a(f"v_add_f32_dpp v{96+i}, v{96+i}, v{96+i} row_ror:8 row_mask:0xf bank_mask:0xf")
    swap_reduce16(a, 96)
    swap_reduce16(a, 112)
    a("""
    v_lshrrev_b32 v4, 6, v0
    v_lshlrev_b32 v4, 9, v4
    v_lshl_add_u32 v4, v62, 6, v4
    v_bfe_u32 v5, v0, 4, 2
    v_lshl_add_u32 v4, v5, 4, v4
    ds_write_b128 v4, v[96:99] offset:4096
    ds_write_b128 v4, v[112:115] offset:12288
    s_waitcnt lgkmcnt(0)
    s_barrier
    v_cmp_gt_u32 vcc, 128, v0
    s_and_saveexec_b64 s[60:61], vcc
    s_cbranch_execz L_gu_end
    v_lshlrev_b32 v4, 2, v0
    """)
    for w in range(16):
        a(f"ds_read_b32 v{8+w}, v4 offset:{4096+w*512}")
        a(f"ds_read_b32 v{32+w}, v4 offset:{12288+w*512}")
    a("s_waitcnt lgkmcnt(0)")
    for w in range(1, 16):
        a(f"v_add_f32 v8, v8, v{8+w}")
        a(f"v_add_f32 v32, v32, v{32+w}")
    rnd_bf16(a, 8, 9)
    rnd_bf16(a, 32, 9)
    a("""
    v_mul_f32 v9, v8, v8
    v_mul_f32 v9, v9, v8
    v_mov_b32 v10, 0x3d372713
    v_fma_f32 v9, v9, v10, v8
    v_mul_f32 v9, 0x40135761, v9    ; 2*0.7978845608*log2e = 2.3022082
    v_exp_f32 v9, v9
    s_nop 0
    v_add_f32 v9, 1.0, v9
    v_rcp_f32 v9, v9
    s_nop 0
    v_fma_f32 v9, v9, -2.0, 1.0     ; tanh
    v_add_f32 v9, 1.0, v9
    v_mul_f32 v9, 0.5, v9
    v_mul_f32 v9, v9, v8
    """)
    rnd_bf16(a, 9, 10)
    a("v_mul_f32 v9, v9, v32")
    rnd_bf16(a, 9, 10)
    a(f"""
    v_lshrrev_b32 v4, 4, v0
    v_lshlrev_b32 v4, 3, v4
    v_and_b32 v5, 7, v0
    v_add_u32 v4, v4, v5
    v_bfe_u32 v5, v0, 3, 1
    v_mul_u32_u24 v5, 1792, v5
    v_add_u32 v4, v4, v5
    v_lshlrev_b32 v4, 2, v4
    s_lshl_b32 s56, s2, 8
    v_add_u32 v4, s56, v4
    v_add_u32 v4, {WS_ACT}, v4
    global_store_dword v4, v9, s[42:43]
L_gu_end:
    s_or_b64 exec, exec, s[60:61]
    """)

def k_down(a):
    prologue(a, 28)
    a("""
    v_and_b32 v62, 1, v0         ; cg
    v_lshrrev_b32 v63, 1, v0     ; rg 0..511
    v_mul_u32_u24 v3, 896, v63
    v_lshl_add_u32 v3, v62, 4, v3
    s_lshl_b32 s56, s2, 5
    s_add_u32 s57, s56, 458752
    s_add_u32 s58, s57, 458752
    s_add_u32 s59, s58, 458752
    v_lshrrev_b32 v7, 6, v0
    s_nop 0
    v_readfirstlane_b32 s60, v7
    s_waitcnt lgkmcnt(0)
    """)
    srd(a, 44, 32, 1792*896)
    for i in range(4):
        a(f"buffer_load_dwordx4 {vr(64+4*i,4)}, v3, s[44:47], s{56+i} offen")
    a(f"""
    v_lshlrev_b32 v4, 2, v0
    v_add_u32 v4, {WS_ACT}, v4
    v_mov_b32 v26, 0
    v_mov_b32 v27, 0
    global_load_dword v24, v4, s[42:43]
    v_add_u32 v5, 7168, v4
    global_load_dword v25, v5, s[42:43]
    v_cmp_gt_u32 vcc, 768, v0
    s_and_saveexec_b64 s[62:63], vcc
    v_add_u32 v6, 4096, v4
    v_add_u32 v7, 4096, v5
    global_load_dword v26, v6, s[42:43]
    global_load_dword v27, v7, s[42:43]
    s_mov_b64 exec, s[62:63]
    v_lshlrev_b32 v4, 3, v0
    s_waitcnt vmcnt(0)
    ds_write_b64 v4, v[24:25]
    ds_write_b64 v4, v[26:27] offset:8192
    s_cmp_ge_u32 s60, 2
    s_cbranch_scc1 L_dn_skip
    v_and_b32 v1, 63, v0
    """)
    x1_phase(a)
    a(f"""
    s_mul_i32 s61, s60, {2688*4}
    v_lshl_add_u32 v3, v1, 2, s61
    """)
    a(f"v_add_u32 v3, {WS_MOD + 5*448*4}, v3")
    for i in range(7):
        a(f"global_load_dword v{16+i}, v3, s[42:43] offset:{i*256}")
    a(f"""
    s_mul_i32 s61, s60, 1792
    v_lshl_add_u32 v3, v1, 2, s61
    s_waitcnt vmcnt(0)
    """)
    for i in range(7):
        a(f"ds_write_b32 v3, v{8+i} offset:{32768+i*256}")
        a(f"ds_write_b32 v3, v{16+i} offset:{36864+i*256}")
    a("""
L_dn_skip:
    s_waitcnt lgkmcnt(0)
    s_barrier
    v_lshlrev_b32 v4, 3, v63
    ds_read_b64 v[24:25], v4
    ds_read_b64 v[26:27], v4 offset:4096
    ds_read_b64 v[28:29], v4 offset:8192
    ds_read_b64 v[30:31], v4 offset:12288
    """)
    zero(a, 32, 16)
    a("s_waitcnt vmcnt(0) lgkmcnt(0)")
    for i in range(4):
        fma_tile(a, 64+4*i, 32, 24+2*i, 25+2*i, 48)
    a("s_nop 1")
    for m in ["quad_perm:[2,3,0,1]", "row_ror:4", "row_ror:8"]:
        for i in range(16):
            a(f"v_add_f32_dpp v{32+i}, v{32+i}, v{32+i} {m} row_mask:0xf bank_mask:0xf")
        a("s_nop 1")
    swap_reduce16(a, 32)
    a("""
    v_lshrrev_b32 v4, 6, v0
    v_lshlrev_b32 v4, 7, v4
    v_lshl_add_u32 v4, v62, 6, v4
    v_bfe_u32 v7, v0, 4, 2
    v_lshl_add_u32 v4, v7, 4, v4
    ds_write_b128 v4, v[32:35] offset:16384
    s_waitcnt lgkmcnt(0)
    s_barrier
    v_cmp_gt_u32 vcc, 32, v0
    s_and_saveexec_b64 s[60:61], vcc
    s_cbranch_execz L_dn_end
    v_lshlrev_b32 v4, 2, v0
    """)
    for w in range(16):
        a(f"ds_read_b32 v{8+w}, v4 offset:{16384+w*128}")
    a("""
    v_lshrrev_b32 v4, 4, v0
    v_lshlrev_b32 v4, 3, v4
    v_and_b32 v5, 7, v0
    v_add_u32 v4, v4, v5
    s_lshl_b32 s56, s2, 4
    v_add_u32 v4, s56, v4
    v_bfe_u32 v5, v0, 3, 1
    v_mul_u32_u24 v5, 448, v5
    v_add_u32 v4, v4, v5         ; b*448+col
    v_lshlrev_b32 v5, 2, v4
    ds_read_b32 v30, v5 offset:32768
    ds_read_b32 v31, v5 offset:36864
    s_waitcnt lgkmcnt(0)
    """)
    for w in range(1, 16):
        a(f"v_add_f32 v8, v8, v{8+w}")
    rnd_bf16(a, 8, 9)
    a("v_mul_f32 v8, v8, v31")
    rnd_bf16(a, 8, 9)
    a("""
    v_add_f32 v8, v8, v30
    v_cvt_pk_bf16_f32 v8, v8, v8
    v_lshlrev_b32 v4, 1, v4
    global_store_short v4, v8, s[38:39]
L_dn_end:
    s_or_b64 exec, exec, s[60:61]
    """)

KERNELS = [("mod_kernel", k_mod, 42, 16384), ("q_kernel", k_q, 256, 8192), ("att_kernel", k_att, 256, 16384+256),
           ("wo_kernel", k_wo, 256, 8192+4096), ("gu_kernel", k_gu, 28, 20480), ("down_kernel", k_down, 28, 40960)]

def main():
    hdr = open("cdna_kernels/" + NAME + ".s.ref").read().split("\n")
    out = []
    for l in hdr:
        if l.startswith("; Override") or l.startswith("; grid=") or l.startswith("; @launch") or l.startswith(".amdgcn"):
            break
        out.append(l)
    for k, f, g, lds in KERNELS:
        out.append(f"; @launch kernel={k} grid=({g},1,1) block=(1024,1,1) lds={lds}")
    out.append('.amdgcn_target "amdgcn-amd-amdhsa--gfx950"')
    out.append(".text")
    body = []
    for k, f, g, lds in KERNELS:
        a = Asm(); a.kname = k
        f(a)
        body.append(f".globl {k}\n.p2align 8\n.type {k},@function\n{k}:\n" + a.text() + f"L_exit_{k}:\n    s_endpgm\n")
    out.append("\n".join(body))
    out.append('.section .rodata,"a"')
    for k, f, g, lds in KERNELS:
        out.append(f""".p2align 6
.amdhsa_kernel {k}
  .amdhsa_next_free_vgpr 128
  .amdhsa_next_free_sgpr 102
  .amdhsa_accum_offset 128
  .amdhsa_group_segment_fixed_size 0
  .amdhsa_kernarg_size 112
  .amdhsa_user_sgpr_count 2
  .amdhsa_user_sgpr_kernarg_segment_ptr 1
  .amdhsa_system_sgpr_workgroup_id_x 1
.end_amdhsa_kernel""")
    open("cdna_kernels/" + NAME + ".s", "w").write("\n".join(out) + "\n")

if __name__ == '__main__':
    main()
```

```python
import sys, os
from asmlib import *
from gen1_lib import srd, rnd_bf16, wave_allsum, fma_tile, swap_reduce16, zero, ln_phase

NAME = "adaLN_cond__mha_block_cached__geglu_ffn__decode"
STAMPS = int(os.environ.get("STAMPS", "0"))

G_MODC = 0x00000
G_Q    = 0x04000
G_MODN = 0x0C000
G_PART = 0x20000
PART_STRIDE = 2112
G_ATT  = 0xA0000
G_ACT  = 0xC0000
G_STAMP= 0x100000

L_A    = 0x0000
L_S    = 0x1000
L_NONCE= 0x2000
L_X1   = 0x2100
L_ATTP = 0x2F00
L_MODN = 0x4B00
L_RED  = 0x8300
L_ACT  = 0xC300
LDS_TOTAL = 0x10300

NT = 19
NVP = 5
KR = 32
VP = 108
MAXPOLL = int(os.environ.get('MAXPOLL', '20000'))
KWIN = int(os.environ.get('KWIN', '4'))

FINE = int(os.environ.get("FINE", "0"))
def fstamp(a, idx):
    if STAMPS and FINE:
        a(f"s_memrealtime s[{82+2*idx}:{83+2*idx}]")
def stamp(a, idx):
    if FINE and idx > 0:
        idx = min(idx + 5, 9)
    if STAMPS:
        a(f"s_memrealtime s[{82+2*min(idx,9)}:{83+2*min(idx,9)}]")

def stamp_store(a, n):
    if not STAMPS: return
    a(f"""
    s_waitcnt lgkmcnt(0)
    v_cmp_eq_u32 vcc, 0, v0
    s_and_saveexec_b64 s[60:61], vcc
    s_lshl_b32 s56, s2, 7
    v_mov_b32 v4, s56
    v_add_u32 v4, {G_STAMP}, v4
    """)
    for i in range(n):
        a(f"""
        v_mov_b32 v8, s{82+2*i}
        v_mov_b32 v9, s{83+2*i}
        global_store_dwordx2 v4, v[8:9], s[42:43] offset:{8*i}
        """)
    a("s_mov_b64 exec, s[60:61]")

def poll(a, name, loads, tagl="s80", tagh="s81", tmp=(2,3), sleep=1):
    t0, t1 = tmp
    a(f"s_mov_b32 s79, {MAXPOLL}")
    a(f"L_poll_{name}:")
    for (d, va, off) in loads:
        a(f"global_load_dwordx4 {vr(d,4)}, v{va}, s[42:43] offset:{off} sc1")
    a("s_waitcnt vmcnt(0)")
    first = True
    for (d, va, off) in loads:
        if first:
            a(f"v_xor_b32 v{t0}, {tagl}, v{d+2}")
            first = False
        else:
            a(f"v_xor_b32 v{t1}, {tagl}, v{d+2}")
            a(f"v_or_b32 v{t0}, v{t0}, v{t1}")
        a(f"v_xor_b32 v{t1}, {tagh}, v{d+3}")
        a(f"v_or_b32 v{t0}, v{t0}, v{t1}")
    a(f"""
    v_cmp_ne_u32 vcc, 0, v{t0}
    s_cbranch_vccz L_pollok_{name}
    s_sleep {sleep}
    s_sub_u32 s79, s79, 1
    s_cmp_lg_u32 s79, 0
    s_cbranch_scc1 L_poll_{name}
L_pollok_{name}:
    """)

def red_lanes(a, acc, n, nb):
    steps = []
    if nb <= 1: steps.append("quad_perm:[2,3,0,1]")
    if nb <= 2: steps.append("row_ror:4")
    if nb <= 3: steps.append("row_ror:8")
    for m in steps:
        a("s_nop 1")
        for i in range(n):
            a(f"v_add_f32_dpp v{acc+i}, v{acc+i}, v{acc+i} {m} row_mask:0xf bank_mask:0xf")

def red_write(a, acc, nb, base, va=4, vt=5):
    a(f"""
    v_lshrrev_b32 v{va}, 6, v0
    v_lshlrev_b32 v{va}, {6+nb}, v{va}
    v_and_b32 v{vt}, {(1<<nb)-1}, v0
    v_lshl_add_u32 v{va}, v{vt}, 6, v{va}
    v_bfe_u32 v{vt}, v0, 4, 2
    v_lshl_add_u32 v{va}, v{vt}, 4, v{va}
    ds_write_b128 v{va}, {vr(acc,4)} offset:{base}
    """)

def stream(a):
    a(f"""
L_stream:
    {"s_endpgm" if os.environ.get("NOSTREAM") else ""}
    s_sub_u32 s56, s2, 32
    s_mul_hi_u32 s57, s56, 0x24924925
    s_mul_i32 s58, s57, 7
    s_sub_u32 s58, s56, s58
    s_lshl_b32 s59, s57, 21
    s_mul_i32 s61, s58, 311296
    v_lshlrev_b32 v1, 4, v0
    v_add_u32 v1, s61, v1
    s_waitcnt lgkmcnt(0)
    s_add_u32 s44, s18, s59
    s_addc_u32 s45, s19, 0
    s_and_b32 s45, s45, 0xffff
    s_mov_b32 s46, 0x200000
    s_mov_b32 s47, 0x00020000
    s_add_u32 s48, s20, s59
    s_addc_u32 s49, s21, 0
    s_and_b32 s49, s49, 0xffff
    s_mov_b32 s50, 0x200000
    s_mov_b32 s51, 0x00020000
    s_mov_b32 s60, 0
    """)
    for t in range(NT):
        if t >= KWIN:
            a(f"s_waitcnt vmcnt({KWIN-1})")
        a(f"buffer_load_dwordx4 {vr(KR+4*t,4)}, v1, s[44:47], s60 offen nt")
        if t < NT-1:
            a("s_add_u32 s60, s60, 16384")
    a(f"""
    v_and_b32 v2, 31, v0
    v_lshlrev_b32 v2, 5, v2
    s_lshl_b32 s61, s57, 10
    v_add_u32 v2, s61, v2
    v_add_u32 v3, {G_Q}, v2
    v_mov_b32 v31, 0
    s_mov_b32 s60, 0
    s_waitcnt vmcnt(3)
    global_load_dwordx2 v[12:13], v31, s[40:41] sc1
    global_load_dwordx4 v[4:7], v3, s[42:43] sc1
    global_load_dwordx4 v[8:11], v3, s[42:43] offset:16 sc1
    """)
    for t in range(NVP):
        a(f"buffer_load_dwordx4 {vr(VP+4*t,4)}, v1, s[48:51], s60 offen nt")
        a("s_add_u32 s60, s60, 16384")
    a(f"""
    s_mov_b32 s79, {MAXPOLL}
    s_waitcnt vmcnt({NVP})
L_st_chk:
    v_xor_b32 v14, v12, v6
    v_xor_b32 v15, v13, v7
    v_xor_b32 v16, v12, v10
    v_xor_b32 v17, v13, v11
    v_or3_b32 v14, v14, v15, v16
    v_or_b32 v14, v14, v17
    v_cmp_eq_u32 s[62:63], 0, v12
    v_cmp_ne_u32 vcc, 0, v14
    s_or_b64 vcc, vcc, s[62:63]
    s_cbranch_vccz L_st_ok
    s_sub_u32 s79, s79, 1
    s_cmp_eq_u32 s79, 0
    s_cbranch_scc1 L_st_ok
    s_sleep 4
    global_load_dwordx2 v[12:13], v31, s[40:41] sc1
    global_load_dwordx4 v[4:7], v3, s[42:43] sc1
    global_load_dwordx4 v[8:11], v3, s[42:43] offset:16 sc1
    s_waitcnt vmcnt(0)
    s_branch L_st_chk
L_st_ok:
    v_readfirstlane_b32 s80, v12
    v_readfirstlane_b32 s81, v13
    """)
    stamp(a, 1)
    qf = [4, 5, 8, 9]
    S = 12
    for t in range(NT):
        k = KR + 4*t
        a(f"v_dot2_f32_bf16 v{S+t}, v{k}, v{qf[0]}, 0")
        for d in range(1, 4):
            a(f"v_dot2_f32_bf16 v{S+t}, v{k+d}, v{qf[d]}, v{S+t}")
        if t + NVP < NT:
            a(f"buffer_load_dwordx4 {vr(k,4)}, v1, s[48:51], s60 offen nt")
            a("s_add_u32 s60, s60, 16384")
    TMP = 88
    a("s_nop 1")
    for m in ["quad_perm:[1,0,3,2]", "quad_perm:[2,3,0,1]", "row_half_mirror", "row_mirror"]:
        for t in range(NT):
            a(f"v_add_f32_dpp v{S+t}, v{S+t}, v{S+t} {m} row_mask:0xf bank_mask:0xf")
        a("s_nop 1")
    for t in range(NT):
        a(f"v_mov_b32 v{TMP+t}, v{S+t}")
    a("s_nop 1")
    for t in range(NT):
        a(f"v_permlane16_swap_b32 v{S+t}, v{TMP+t}")
    for t in range(NT):
        a(f"v_add_f32 v{S+t}, v{S+t}, v{TMP+t}")
    for t in range(NT):
        rnd_bf16(a, S+t, 2)
    a("""
    s_mov_b32 s62, 0x3db8aa3b
    s_cmp_eq_u32 s58, 6
    s_cselect_b32 s63, 0xff000000, 0
    """)
    for t in range(NT):
        a(f"v_mul_f32 v{S+t}, s62, v{S+t}")
    for t in range(14, NT):
        a(f"v_add_f32 v{S+t}, s63, v{S+t}")
    a(f"v_max_f32 v2, v{S}, v{S+1}")
    for t in range(2, NT):
        a(f"v_max_f32 v2, v2, v{S+t}")
    a("""
    v_mov_b32 v3, v2
    s_nop 1
    v_permlane32_swap_b32 v2, v3
    v_max_f32 v2, v2, v3
    """)
    for t in range(NT):
        a(f"v_sub_f32 v{S+t}, v{S+t}, v2")
        a(f"v_exp_f32 v{S+t}, v{S+t}")
    a("s_nop 0")
    a(f"v_add_f32 v3, v{S}, v{S+1}")
    for t in range(2, NT):
        a(f"v_add_f32 v3, v3, v{S+t}")
    a("""
    v_mov_b32 v6, v3
    s_nop 1
    v_permlane32_swap_b32 v3, v6
    v_add_f32 v3, v3, v6
    """)
    ACC = 88
    zero(a, ACC, 8)
    for t in range(NT):
        k = VP + 4*t if t < NVP else KR + 4*(t-NVP)
        a(f"s_waitcnt vmcnt({NT-1-t})")
        for d in range(4):
            a(f"""
            v_lshlrev_b32 v96, 16, v{k+d}
            v_and_b32 v97, 0xffff0000, v{k+d}
            v_fmac_f32 v{ACC+2*d}, v{S+t}, v96
            v_fmac_f32 v{ACC+2*d+1}, v{S+t}, v97
            """)
    stamp(a, 2)
    a("s_nop 1")
    for i in range(4):
        a(f"v_permlane32_swap_b32 v{ACC+i}, v{ACC+4+i}")
    for i in range(4):
        a(f"v_add_f32 v{ACC+i}, v{ACC+i}, v{ACC+4+i}")
    a(f"""
    v_and_b32 v4, 31, v0
    v_lshlrev_b32 v4, 5, v4
    v_bfe_u32 v5, v0, 5, 1
    v_lshl_add_u32 v4, v5, 4, v4
    v_lshrrev_b32 v5, 6, v0
    v_lshl_add_u32 v4, v5, 10, v4
    ds_write_b128 v4, {vr(ACC,4)}
    v_lshlrev_b32 v5, 3, v5
    ds_write_b64 v5, v[2:3] offset:16384
    s_waitcnt lgkmcnt(0)
    s_barrier
    v_cmp_gt_u32 vcc, 128, v0
    s_and_saveexec_b64 s[60:61], vcc
    s_cbranch_execz L_st_end
    v_mov_b32 v5, 0
    """)
    for w in range(8):
        a(f"ds_read_b128 {vr(32+4*w,4)}, v5 offset:{16384+16*w}")
    a("v_lshlrev_b32 v4, 3, v0")
    for w in range(16):
        a(f"ds_read_b64 {vr(64+2*w,2)}, v4 offset:{w*1024}")
    a("s_waitcnt lgkmcnt(0)")
    a("v_max_f32 v8, v32, v34")
    for w in range(2, 16):
        a(f"v_max_f32 v8, v8, v{32+2*w}")
    zero(a, 9, 1)
    zero(a, 12, 2)
    for w in range(16):
        a(f"""
        v_sub_f32 v11, v{32+2*w}, v8
        v_exp_f32 v11, v11
        s_nop 0
        v_fmac_f32 v9, v11, v{33+2*w}
        v_fmac_f32 v12, v11, v{64+2*w}
        v_fmac_f32 v13, v11, v{65+2*w}
        """)
    a(f"""
    s_mul_i32 s56, s56, {PART_STRIDE}
    s_add_u32 s56, s56, {G_PART}
    v_lshlrev_b32 v4, 4, v0
    v_add_u32 v4, s56, v4
    v_mov_b32 v14, s80
    v_mov_b32 v15, s81
    v_mov_b32 v10, s80
    v_mov_b32 v11, s81
    global_store_dwordx4 v4, v[12:15], s[42:43] sc1
    v_cmp_eq_u32 vcc, 0, v0
    s_and_b64 exec, exec, vcc
    global_store_dwordx4 v4, v[8:11], s[42:43] offset:2048 sc1
L_st_end:
    s_mov_b64 exec, s[60:61]
    """)
    stamp(a, 3)
    stamp_store(a, 4)
    a("s_endpgm")

def service(a):
    a("""
    v_lshrrev_b32 v1, 6, v0
    s_nop 0
    v_readfirstlane_b32 s60, v1      ; wave
    v_and_b32 v1, 63, v0
    v_mov_b32 v31, 0
    s_waitcnt lgkmcnt(0)
    s_lshl_b32 s61, s2, 6
    v_mov_b32 v30, s61
    global_load_dword v29, v30, s[42:43] sc1
    s_cmp_lg_u32 s60, 15
    s_cbranch_scc1 L_sv_nononce
    s_memrealtime s[62:63]
    s_waitcnt lgkmcnt(0)
    s_or_b32 s62, s62, 1
    v_mov_b32 v8, s62
    v_mov_b32 v9, s63
    v_mov_b32 v10, 0
    v_mov_b32 v11, 0
    s_mov_b64 s[64:65], exec
    s_mov_b64 exec, 1
    global_atomic_cmpswap_x2 v[12:13], v31, v[8:11], s[40:41] sc0 sc1
    s_mov_b64 exec, s[64:65]
L_sv_nononce:
    s_cmp_ge_u32 s60, 2
    s_cbranch_scc1 L_sv_nox
    s_mul_i32 s61, s60, 896
    v_lshl_add_u32 v2, v1, 1, s61
    """)
    for i in range(7):
        a(f"global_load_ushort v{60+i}, v2, s[16:17] offset:{i*128}")
    a("L_sv_nox:")
    srd(a, 44, 34, 1792)
    srd(a, 48, 36, 448*5376)
    srd(a, 52, 22, 448*8192)
    a("""
    v_lshlrev_b32 v2, 1, v0
    buffer_load_ushort v28, v2, s[44:47], 0 offen
    v_lshrrev_b32 v6, 2, v0
    v_mul_u32_u24 v3, 5376, v6
    v_bfe_u32 v4, v0, 1, 1
    v_mul_u32_u24 v4, 896, v4
    v_add_u32 v3, v3, v4
    v_and_b32 v4, 1, v0
    v_lshl_add_u32 v3, v4, 4, v3
    s_lshl_b32 s56, s2, 5
    s_add_u32 s57, s56, 1376256
    s_cmp_ge_u32 s2, 28
    s_cselect_b32 s56, 0x7f000000, s56
    s_cselect_b32 s57, 0x7f000000, s57
    buffer_load_dwordx4 v[16:19], v3, s[48:51], s56 offen nt
    buffer_load_dwordx4 v[20:23], v3, s[48:51], s57 offen nt
    v_cmp_le_u32 vcc, 448, v0
    s_nop 1
    v_cndmask_b32 v2, 0, 1, vcc
    v_mul_u32_u24 v3, 448, v2
    v_sub_u32 v3, v0, v3
    v_lshl_add_u32 v2, v3, 1, v2
    v_lshlrev_b32 v2, 2, v2
    v_lshlrev_b32 v3, 2, v0
    v_cmp_le_u32 vcc, 896, v0
    s_nop 1
    v_cndmask_b32 v2, v2, v3, vcc
    """)
    fstamp(a, 1)
    a("""
    v_mov_b32 v5, 0
    s_cmp_ge_u32 s60, 14
    s_cbranch_scc1 L_sv_nocwait
    s_waitcnt vmcnt(10)
    """)
    fstamp(a, 2)
    a("""
    s_waitcnt vmcnt(3)
    """)
    fstamp(a, 3)
    a("""
    s_waitcnt vmcnt(2)
    """)
    fstamp(a, 4)
    a("""
    v_lshlrev_b32 v5, 16, v28
L_sv_nocwait:
    v_mul_f32 v3, 0xbfb8aa3b, v5
    v_exp_f32 v3, v3
    s_nop 0
    v_add_f32 v3, 1.0, v3
    v_rcp_f32 v3, v3
    s_nop 0
    v_mul_f32 v5, v5, v3
    """)
    rnd_bf16(a, 5, 3)
    a(f"""
    ds_write_b32 v2, v5 offset:{L_S}
    s_cmp_lt_u32 s60, 14
    s_cbranch_scc1 L_sv_nopad
    ds_write_b32 v2, v5 offset:{L_A}
L_sv_nopad:
    s_waitcnt lgkmcnt(0)
    s_barrier
    """)
    fstamp(a, 5)
    a("""
    v_lshrrev_b32 v7, 4, v0
    v_lshlrev_b32 v3, 13, v7
    v_and_b32 v4, 15, v0
    v_lshl_add_u32 v3, v4, 4, v3
    s_lshl_b32 s56, s2, 8
    """)
    for i in range(7):
        a(f"buffer_load_dwordx4 {vr(32+4*i,4)}, v3, s[52:55], s56 offen nt")
        a("s_add_u32 s56, s56, 524288")
    a("""
    """)
    a(f"""
    v_lshlrev_b32 v4, 3, v6          ; rg*8
    ds_read_b64 v[24:25], v4 offset:{L_S}
    ds_read_b64 v[26:27], v4 offset:{L_S+2048}
    """)
    zero(a, 72, 16)
    a("""
    s_waitcnt lgkmcnt(0)
    s_waitcnt vmcnt(7)
    """)
    stamp(a, 1)
    fma_tile(a, 16, 72, 24, 25, 28)
    fma_tile(a, 20, 72, 26, 27, 28)
    red_lanes(a, 72, 16, 2)
    swap_reduce16(a, 72)
    red_write(a, 72, 2, L_RED)
    a(f"""
    s_cmp_lg_u32 s60, 15
    s_cbranch_scc1 L_sv_nononce2
    v_cmp_eq_u32 vcc, 0, v12
    s_nop 1
    v_cndmask_b32 v12, v12, v8, vcc
    v_cndmask_b32 v13, v13, v9, vcc
    s_mov_b64 s[64:65], exec
    s_mov_b64 exec, 1
    ds_write_b64 v31, v[12:13] offset:{L_NONCE}
    s_mov_b64 exec, s[64:65]
L_sv_nononce2:
    s_waitcnt lgkmcnt(0)
    s_barrier
    ds_read_b64 v[2:3], v31 offset:{L_NONCE}
    s_waitcnt lgkmcnt(0)
    v_readfirstlane_b32 s80, v2
    v_readfirstlane_b32 s81, v3
    s_cmp_ge_u32 s2, 28
    s_cbranch_scc1 L_sv_modc_done
    v_cmp_gt_u32 vcc, 32, v0
    s_and_saveexec_b64 s[64:65], vcc
    s_cbranch_execz L_sv_modc_end
    ; b=f>>4, c16=f&15 ; word=(c16>>3)*16 + b*8 + (c16&7)
    v_bfe_u32 v2, v0, 3, 1
    v_lshlrev_b32 v2, 4, v2
    v_lshrrev_b32 v3, 4, v0
    v_lshl_add_u32 v2, v3, 3, v2
    v_and_b32 v4, 7, v0
    v_add_u32 v2, v2, v4
    v_lshlrev_b32 v2, 2, v2
    """)
    for w in range(16):
        a(f"ds_read_b32 v{72+w}, v2 offset:{L_RED+w*256}")
        a(f"ds_read_b32 v{88+w}, v2 offset:{L_RED+w*256+128}")
    a("s_waitcnt lgkmcnt(0)")
    for w in range(1, 16):
        a(f"v_add_f32 v72, v72, v{72+w}")
        a(f"v_add_f32 v88, v88, v{88+w}")
    rnd_bf16(a, 72, 4)
    rnd_bf16(a, 88, 4)
    a(f"""
    v_mov_b32 v73, v88
    v_mov_b32 v74, s80
    v_mov_b32 v75, s81
    v_mul_u32_u24 v3, 448, v3
    v_and_b32 v4, 15, v0
    v_add_u32 v3, v3, v4
    s_lshl_b32 s56, s2, 4
    v_add_u32 v3, s56, v3
    v_lshlrev_b32 v3, 4, v3
    global_store_dwordx4 v3, v[72:75], s[42:43] offset:{G_MODC} sc1
L_sv_modc_end:
    s_mov_b64 exec, s[64:65]
L_sv_modc_done:
    """)
    stamp(a, 2)
    a(f"""
    s_cmp_ge_u32 s60, 2
    s_cbranch_scc1 L_sv_ln1_skip
    s_mul_i32 s61, s60, 448
    v_add_u32 v4, s61, v1
    v_lshlrev_b32 v4, 4, v4
    v_add_u32 v5, 4096, v4
    """)
    loads = [(96+4*i, 4 if i < 4 else 5, (i%4)*1024 + G_MODC) for i in range(7)]
    poll(a, "modc", loads)
    for i in range(7):
        a(f"v_mov_b32 v{8+i}, v{96+4*i}")
        a(f"v_mov_b32 v{15+i}, v{97+4*i}")
        a(f"v_lshlrev_b32 v{60+i}, 16, v{60+i}")
    a(f"""
    s_mul_i32 s61, s60, 1792
    v_lshl_add_u32 v4, v1, 2, s61
    """)
    for i in range(7):
        a(f"ds_write_b32 v4, v{60+i} offset:{L_X1+i*256}")
    a(f"""
    v_lshlrev_b32 v{8+14+7}, 3, v1
    s_lshl_b32 s61, s60, 2
    v_add_u32 v{8+14+7}, s61, v{8+14+7}
    """)
    ln_phase(a, 60, 0, 1, L_A, 8)
    a(f"""
L_sv_ln1_skip:
    s_waitcnt lgkmcnt(0)
    s_barrier
    v_lshlrev_b32 v4, 3, v7
    """)
    stamp(a, 3)
    for i in range(7):
        a(f"ds_read_b64 {vr(8+2*i,2)}, v4 offset:{L_A+i*512}")
    zero(a, 72, 16)
    a("s_waitcnt vmcnt(0) lgkmcnt(0)")
    for i in range(7):
        fma_tile(a, 32+4*i, 72, 8+2*i, 9+2*i, 28)
    swap_reduce16(a, 72)
    red_write(a, 72, 4, L_RED)
    a(f"""
    s_waitcnt lgkmcnt(0)
    s_barrier
    v_cmp_gt_u32 vcc, 64, v0
    s_and_saveexec_b64 s[64:65], vcc
    s_cbranch_execz L_sv_q_end
    ; b=f>>5, g=f&31 ; word = (g>>1)*16 + b*8 + (g&1)*4
    v_bfe_u32 v2, v0, 1, 4
    v_lshlrev_b32 v2, 4, v2
    v_lshrrev_b32 v3, 5, v0
    v_lshl_add_u32 v2, v3, 3, v2
    v_and_b32 v4, 1, v0
    v_lshl_add_u32 v2, v4, 2, v2
    v_lshlrev_b32 v2, 2, v2
    """)
    for w in range(16):
        a(f"ds_read_b128 {vr(32+4*w,4)}, v2 offset:{L_RED+w*1024}")
    a("s_waitcnt lgkmcnt(0)")
    for w in range(1, 16):
        for e in range(4):
            a(f"v_add_f32 v{32+e}, v{32+e}, v{32+4*w+e}")
    a(f"""
    v_cvt_pk_bf16_f32 v32, v32, v33
    v_cvt_pk_bf16_f32 v33, v34, v35
    v_mov_b32 v34, s80
    v_mov_b32 v35, s81
    v_lshlrev_b32 v3, 10, v3
    v_and_b32 v4, 31, v0
    v_add_u32 v3, v3, v4
    s_lshl_b32 s56, s2, 5
    v_add_u32 v3, s56, v3
    v_lshlrev_b32 v3, 4, v3
    v_add_u32 v3, {G_Q}, v3
    global_store_dwordx4 v3, v[32:35], s[42:43] sc1
L_sv_q_end:
    s_mov_b64 exec, s[64:65]
    """)
    stamp(a, 4)
    srd(a, 44, 24, 4096*896)
    srd(a, 52, 28, 448*3584)
    a("""
    v_and_b32 v2, 7, v0
    v_lshrrev_b32 v6, 3, v0
    v_mul_u32_u24 v3, 5376, v6
    v_lshl_add_u32 v3, v2, 4, v3
    s_lshl_b32 s56, s2, 7
    s_add_u32 s56, s56, 1792
    s_cmp_ge_u32 s2, 28
    s_cselect_b32 s56, 0x7f000000, s56
    """)
    for i in range(4):
        a(f"buffer_load_dwordx4 {vr(8+4*i,4)}, v3, s[48:51], s56 offen nt")
        if i < 3: a("s_add_u32 s56, s56, 688128")
    a("""
    v_and_b32 v4, 31, v0
    v_lshrrev_b32 v5, 5, v0
    v_mul_u32_u24 v3, 896, v5
    v_lshl_add_u32 v3, v4, 4, v3
    v_cmp_le_u32 vcc, 28, v4
    v_mov_b32 v24, 0x7f000000
    s_nop 0
    v_cndmask_b32 v3, v3, v24, vcc
    s_lshr_b32 s56, s2, 1
    s_mul_i32 s56, s56, 229376
    s_and_b32 s57, s2, 1
    s_mul_i32 s57, s57, 448
    s_add_u32 s56, s56, s57
    """)
    for i in range(8):
        a(f"buffer_load_dwordx4 {vr(32+4*i,4)}, v3, s[44:47], s56 offen nt")
        if i < 7: a("s_add_u32 s56, s56, 28672")
    srd(a, 44, 30, 448*3584)
    a("""
    v_mul_u32_u24 v3, 3584, v6
    v_lshl_add_u32 v3, v2, 4, v3
    s_lshl_b32 s56, s2, 7
    s_cmp_ge_u32 s2, 28
    s_cselect_b32 s56, 0x7f000000, s56
    """)
    for i in range(4):
        a(f"buffer_load_dwordx4 {vr(64+4*i,4)}, v3, s[52:55], s56 offen nt")
        a(f"buffer_load_dwordx4 {vr(80+4*i,4)}, v3, s[44:47], s56 offen nt")
        if i < 3: a("s_add_u32 s56, s56, 458752")
    srd(a, 52, 32, 1792*896)
    a("""
    v_lshrrev_b32 v4, 1, v0
    v_mul_u32_u24 v3, 896, v4
    v_and_b32 v4, 1, v0
    v_lshl_add_u32 v3, v4, 4, v3
    s_lshl_b32 s56, s2, 5
    s_cmp_ge_u32 s2, 28
    s_cselect_b32 s56, 0x7f000000, s56
    """)
    for i in range(4):
        a(f"buffer_load_dwordx4 {vr(96+4*i,4)}, v3, s[52:55], s56 offen nt")
        if i < 3: a("s_add_u32 s56, s56, 458752")
    a(f"""
    v_lshlrev_b32 v4, 3, v6
    ds_read_b64 v[24:25], v4 offset:{L_S}
    ds_read_b64 v[26:27], v4 offset:{L_S+1024}
    ds_read_b64 v[28:29], v4 offset:{L_S+2048}
    ds_read_b64 v[30:31], v4 offset:{L_S+3072}
    """)
    zero(a, 112, 16)
    a("s_waitcnt vmcnt(20) lgkmcnt(0)")
    for i in range(4):
        fma_tile(a, 8+4*i, 112, 24+2*i, 25+2*i, 2)
    red_lanes(a, 112, 16, 3)
    swap_reduce16(a, 112)
    red_write(a, 112, 3, L_RED)
    a(f"""
    s_waitcnt lgkmcnt(0)
    s_barrier
    s_cmp_ge_u32 s2, 28
    s_cbranch_scc1 L_sv_modn_done
    v_cmp_gt_u32 vcc, 64, v0
    s_and_saveexec_b64 s[64:65], vcc
    s_cbranch_execz L_sv_modn_end
    v_lshrrev_b32 v2, 3, v0
    v_lshlrev_b32 v2, 4, v2
    v_and_b32 v3, 7, v0
    v_add_u32 v2, v2, v3
    v_lshlrev_b32 v2, 2, v2
    """)
    for w in range(16):
        a(f"ds_read_b32 v{8+w}, v2 offset:{L_RED+w*512}")
        a(f"ds_read_b32 v{112+w}, v2 offset:{L_RED+w*512+32}")
    a("s_waitcnt lgkmcnt(0)")
    for w in range(1, 16):
        a(f"v_add_f32 v8, v8, v{8+w}")
        a(f"v_add_f32 v112, v112, v{112+w}")
    rnd_bf16(a, 8, 4)
    rnd_bf16(a, 112, 4)
    a(f"""
    v_mov_b32 v9, v112
    v_mov_b32 v10, s80
    v_mov_b32 v11, s81
    s_lshl_b32 s56, s2, 6
    v_add_u32 v3, s56, v0
    v_lshlrev_b32 v3, 4, v3
    v_add_u32 v3, {G_MODN}, v3
    global_store_dwordx4 v3, v[8:11], s[42:43] sc1
L_sv_modn_end:
    s_mov_b64 exec, s[64:65]
L_sv_modn_done:
    """)
    a(f"""
    v_mov_b32 v31, 0
    s_cmp_lt_u32 s60, 8
    s_cbranch_scc1 L_sv_modn_skip
    s_cmp_ge_u32 s60, 12
    s_cbranch_scc1 L_sv_modn_skip
    s_sub_u32 s61, s60, 8
    s_mul_i32 s62, s61, 7168
    v_lshlrev_b32 v4, 4, v1
    v_add_u32 v4, s62, v4
    v_add_u32 v4, {G_MODN}, v4
    v_add_u32 v5, 4096, v4
    s_mul_i32 s62, s61, 3584
    v_lshl_add_u32 v6, v1, 2, s62
    """)
    regs = [8, 12, 16, 20, 24, 112, 116]
    poll(a, "modn", [(regs[i], 4 if i < 4 else 5, (i%4)*1024) for i in range(7)], tmp=(2,3))
    for i in range(7):
        a(f"ds_write_b32 v6, v{regs[i]} offset:{L_MODN+i*256}")
        a(f"ds_write_b32 v6, v{regs[i]+1} offset:{L_MODN+1792+i*256}")
    a("L_sv_modn_skip:")
    stamp(a, 5)
    a(f"""
    s_cmp_lt_u32 s60, 4
    s_cbranch_scc1 L_sv_part_skip
    s_cmp_ge_u32 s60, 8
    s_cbranch_scc1 L_sv_part_skip
    s_lshr_b32 s56, s2, 1            ; head
    v_bfe_u32 v2, v0, 7, 1           ; b
    v_lshlrev_b32 v2, 4, v2
    v_add_u32 v2, s56, v2            ; bh
    v_mul_u32_u24 v2, {7*PART_STRIDE}, v2
    v_add_u32 v2, {G_PART}, v2
    v_and_b32 v3, 127, v0
    v_lshl_add_u32 v3, v3, 4, v2     ; + p*16
    v_add_u32 v4, {2*PART_STRIDE}, v3
    v_add_u32 v5, {4*PART_STRIDE}, v3
    v_add_u32 v6, {6*PART_STRIDE}, v3
    v_add_u32 v7, {3*PART_STRIDE}, v2
    v_add_u32 v24, {6*PART_STRIDE}, v2
    """)
    mlr = [8, 12, 16, 20, 112, 116, 120]
    mll = [(mlr[0], 2, 2048), (mlr[1], 2, 2048+PART_STRIDE), (mlr[2], 7, 2048-PART_STRIDE), (mlr[3], 7, 2048), (mlr[4], 7, 2048+PART_STRIDE-4096+4096-0)]
    a(f"""
    v_add_u32 v25, 2048, v2
    v_add_u32 v26, {2048+2*PART_STRIDE}, v2
    v_add_u32 v27, {2048+4*PART_STRIDE}, v2
    v_add_u32 v28, {2048+6*PART_STRIDE}, v2
    """)
    mll = [(mlr[0], 25, 0), (mlr[1], 25, PART_STRIDE), (mlr[2], 26, 0), (mlr[3], 26, PART_STRIDE),
           (mlr[4], 27, 0), (mlr[5], 27, PART_STRIDE), (mlr[6], 28, 0)]
    poll(a, "ml", mll, tmp=(29,30), sleep=8)
    a(f"v_max_f32 v29, v{mlr[0]}, v{mlr[1]}")
    for j in range(2, 7):
        a(f"v_max_f32 v29, v29, v{mlr[j]}")
    for j in range(7):
        a(f"v_sub_f32 v{mlr[j]}, v{mlr[j]}, v29")
        a(f"v_exp_f32 v{mlr[j]}, v{mlr[j]}")
    a("s_nop 0")
    a(f"v_mul_f32 v29, v{mlr[0]}, v{mlr[0]+1}")
    for j in range(1, 7):
        a(f"v_fmac_f32 v29, v{mlr[j]}, v{mlr[j]+1}")
    wj = [10, 11, 14, 15, 18, 19, 22]
    a(f"v_mov_b32 v23, v{mlr[3]}")
    a(f"v_mov_b32 v10, v{mlr[0]}")
    a(f"v_mov_b32 v11, v{mlr[1]}")
    a(f"v_mov_b32 v14, v{mlr[2]}")
    a(f"v_mov_b32 v15, v23")
    a(f"v_mov_b32 v18, v{mlr[4]}")
    a(f"v_mov_b32 v19, v{mlr[5]}")
    a(f"v_mov_b32 v22, v{mlr[6]}")
    zero(a, 8, 2)
    poll(a, "pa", [(112, 3, 0), (116, 3, PART_STRIDE), (120, 4, 0), (124, 4, PART_STRIDE)], tmp=(30,31))
    for j in range(4):
        a(f"v_fmac_f32 v8, v{wj[j]}, v{112+4*j}")
        a(f"v_fmac_f32 v9, v{wj[j]}, v{113+4*j}")
    poll(a, "pb", [(112, 5, 0), (116, 5, PART_STRIDE), (120, 6, 0)], tmp=(30,31))
    for j in range(3):
        a(f"v_fmac_f32 v8, v{wj[4+j]}, v{112+4*j}")
        a(f"v_fmac_f32 v9, v{wj[4+j]}, v{113+4*j}")
    a("""
    v_rcp_f32 v30, v29
    s_nop 0
    v_mul_f32 v12, v8, v30
    v_fma_f32 v13, -v12, v29, v8
    v_fmac_f32 v12, v13, v30
    v_mul_f32 v16, v9, v30
    v_fma_f32 v13, -v16, v29, v9
    v_fmac_f32 v16, v13, v30
    """)
    rnd_bf16(a, 12, 13)
    rnd_bf16(a, 16, 13)
    a(f"""
    v_and_b32 v3, 127, v0
    v_lshlrev_b32 v3, 4, v3
    v_bfe_u32 v2, v0, 7, 1
    v_lshl_add_u32 v3, v2, 2, v3
    ds_write_b32 v3, v12 offset:{L_A}
    ds_write_b32 v3, v16 offset:{L_A+8}
    v_mov_b32 v31, 0
L_sv_part_skip:
    s_waitcnt lgkmcnt(0)
    s_barrier
    """)
    stamp(a, 6)
    a(f"""
    v_lshrrev_b32 v5, 5, v0
    v_lshlrev_b32 v4, 3, v5
    """)
    zero(a, 112, 16)
    a("s_waitcnt vmcnt(0)")
    for i in range(8):
        a(f"ds_read_b64 v[2:3], v4 offset:{L_A+i*256}")
        a("s_waitcnt lgkmcnt(0)")
        fma_tile(a, 32+4*i, 112, 2, 3, 6)
    a("s_nop 1")
    for i in range(8):
        a(f"v_permlane32_swap_b32 v{112+i}, v{120+i}")
    for i in range(8):
        a(f"v_add_f32 v{112+i}, v{112+i}, v{120+i}")
    a(f"""
    v_lshlrev_b32 v4, 5, v0
    ds_write_b128 v4, v[112:115] offset:{L_RED}
    ds_write_b128 v4, v[116:119] offset:{L_RED+16}
    s_waitcnt lgkmcnt(0)
    s_barrier
    s_cmp_lt_u32 s60, 4
    s_cbranch_scc1 L_sv_att_skip
    s_cmp_ge_u32 s60, 8
    s_cbranch_scc1 L_sv_att_skip
    v_and_b32 v3, 127, v0
    v_cmp_gt_u32 vcc, 112, v3
    s_and_saveexec_b64 s[64:65], vcc
    s_cbranch_execz L_sv_att_end
    v_bfe_u32 v2, v0, 7, 1
    v_lshlrev_b32 v4, 10, v2
    v_lshl_add_u32 v4, v3, 3, v4
    """)
    for w in range(16):
        a(f"ds_read_b64 {vr(32+2*w,2)}, v4 offset:{L_RED+w*2048}")
    a("s_waitcnt lgkmcnt(0)")
    for w in range(1, 16):
        a(f"v_add_f32 v32, v32, v{32+2*w}")
        a(f"v_add_f32 v33, v33, v{33+2*w}")
    a(f"""
    v_mov_b32 v34, s80
    v_mov_b32 v35, s81
    s_lshl_b32 s56, s2, 1
    v_add_u32 v2, s56, v2            ; s*2+b
    v_mul_u32_u24 v2, 112, v2
    v_add_u32 v2, v2, v3
    v_lshlrev_b32 v2, 4, v2
    v_add_u32 v2, {G_ATT}, v2
    global_store_dwordx4 v2, v[32:35], s[42:43] sc1
L_sv_att_end:
    s_mov_b64 exec, s[64:65]
L_sv_att_skip:
    s_cmp_ge_u32 s2, 28
    s_cbranch_scc1 L_sv_exit
    """)
    stamp(a, 7)
    a(f"""
    v_cmp_gt_u32 vcc, 896, v0
    s_and_saveexec_b64 s[64:65], vcc
    s_cbranch_execz L_sv_h2_end
    v_cmp_le_u32 vcc, 448, v0
    s_nop 1
    v_cndmask_b32 v2, 0, 1, vcc          ; hq
    v_mul_u32_u24 v3, 448, v2
    v_sub_u32 v3, v0, v3                 ; idx
    v_cmp_le_u32 vcc, 224, v3
    s_nop 1
    v_cndmask_b32 v4, 0, 1, vcc          ; b
    v_mul_u32_u24 v5, 224, v4
    v_sub_u32 v5, v3, v5                 ; cp
    v_cmp_le_u32 vcc, 112, v5
    s_nop 1
    v_cndmask_b32 v6, 0, 1, vcc          ; half
    v_mul_u32_u24 v7, 112, v6
    v_sub_u32 v7, v5, v7                 ; pp
    v_lshl_add_u32 v6, v2, 4, v6
    v_lshl_add_u32 v6, v6, 1, v4         ; (..)*2+b
    v_mul_u32_u24 v6, 112, v6
    v_add_u32 v6, v6, v7
    v_lshlrev_b32 v6, 4, v6
    v_add_u32 v6, {G_ATT}, v6
    v_add_u32 v7, 7168, v6
    v_add_u32 v29, 14336, v6
    v_add_u32 v30, 21504, v6
    """)
    a("v_mov_b32 v32, 0\nv_mov_b32 v33, 0")
    poll(a, "h2a", [(112, 6, 0), (116, 7, 0), (120, 29, 0), (124, 30, 0)], tmp=(34,35))
    for j in range(4):
        a(f"v_add_f32 v32, v32, v{112+4*j}")
        a(f"v_add_f32 v33, v33, v{113+4*j}")
    a("""
    v_add_u32 v6, 28672, v6
    v_add_u32 v7, 28672, v7
    v_add_u32 v29, 28672, v29
    v_add_u32 v30, 28672, v30
    """)
    poll(a, "h2b", [(112, 6, 0), (116, 7, 0), (120, 29, 0), (124, 30, 0)], tmp=(34,35))
    for j in range(4):
        a(f"v_add_f32 v32, v32, v{112+4*j}")
        a(f"v_add_f32 v33, v33, v{113+4*j}")
    a(f"""
    v_lshlrev_b32 v4, 3, v0
    ds_write_b64 v4, v[32:33] offset:{L_ATTP}
L_sv_h2_end:
    s_mov_b64 exec, s[64:65]
    s_waitcnt lgkmcnt(0)
    s_barrier
    s_cmp_ge_u32 s60, 2
    s_cbranch_scc1 L_sv_ln2_skip
    s_mul_i32 s61, s60, 1792
    v_lshl_add_u32 v4, v1, 2, s61
    """)
    for i in range(7):
        a(f"ds_read_b32 v{32+i}, v4 offset:{L_ATTP+i*256}")
        a(f"ds_read_b32 v{40+i}, v4 offset:{L_ATTP+3584+i*256}")
        a(f"ds_read_b32 v{48+i}, v4 offset:{L_X1+i*256}")
        a(f"ds_read_b32 v{8+i}, v4 offset:{L_MODN+i*256}")
        a(f"ds_read_b32 v{15+i}, v4 offset:{L_MODN+3584+i*256}")
        a(f"ds_read_b32 v{22+i}, v4 offset:{L_MODN+7168+i*256}")
    a("s_waitcnt lgkmcnt(0)")
    for i in range(7):
        a(f"v_add_f32 v{32+i}, v{32+i}, v{40+i}")
        rnd_bf16(a, 32+i, 5)
        a(f"v_mul_f32 v{32+i}, v{32+i}, v{8+i}")
        rnd_bf16(a, 32+i, 5)
        a(f"v_add_f32 v{48+i}, v{48+i}, v{32+i}")
        rnd_bf16(a, 48+i, 5)
        a(f"ds_write_b32 v4, v{48+i} offset:{L_X1+i*256}")
    a(f"""
    v_lshlrev_b32 v{15+14+7}, 3, v1
    s_lshl_b32 s61, s60, 2
    v_add_u32 v{15+14+7}, s61, v{15+14+7}
    """)
    ln_phase(a, 48, 0, 1, L_A, 15)
    a(f"""
L_sv_ln2_skip:
    s_waitcnt lgkmcnt(0)
    s_barrier
    v_lshrrev_b32 v6, 3, v0
    v_lshlrev_b32 v4, 3, v6
    ds_read_b64 v[24:25], v4 offset:{L_A}
    ds_read_b64 v[26:27], v4 offset:{L_A+1024}
    ds_read_b64 v[28:29], v4 offset:{L_A+2048}
    ds_read_b64 v[30:31], v4 offset:{L_A+3072}
    """)
    stamp(a, 8)
    zero(a, 32, 32)
    a("s_waitcnt lgkmcnt(0)")
    for i in range(4):
        fma_tile(a, 64+4*i, 32, 24+2*i, 25+2*i, 2)
        fma_tile(a, 80+4*i, 48, 24+2*i, 25+2*i, 2)
    red_lanes(a, 32, 32, 3)
    swap_reduce16(a, 32)
    swap_reduce16(a, 48)
    red_write(a, 32, 3, L_RED)
    red_write(a, 48, 3, L_RED+8192)
    a(f"""
    s_waitcnt lgkmcnt(0)
    s_barrier
    v_cmp_gt_u32 vcc, 64, v0
    s_and_saveexec_b64 s[64:65], vcc
    s_cbranch_execz L_sv_act_end
    ; b=f>>5, p=f&31 ; word=(p>>2)*16 + b*8 + (p&3)*2
    v_bfe_u32 v2, v0, 2, 3
    v_lshlrev_b32 v2, 4, v2
    v_lshrrev_b32 v3, 5, v0
    v_lshl_add_u32 v2, v3, 3, v2
    v_and_b32 v4, 3, v0
    v_lshl_add_u32 v2, v4, 1, v2
    v_lshlrev_b32 v2, 2, v2
    """)
    for w in range(16):
        a(f"ds_read_b64 {vr(32+2*w,2)}, v2 offset:{L_RED+w*512}")
        a(f"ds_read_b64 {vr(64+2*w,2)}, v2 offset:{L_RED+8192+w*512}")
    a("s_waitcnt lgkmcnt(0)")
    for w in range(1, 16):
        for e in range(2):
            a(f"v_add_f32 v{32+e}, v{32+e}, v{32+2*w+e}")
            a(f"v_add_f32 v{64+e}, v{64+e}, v{64+2*w+e}")
    for e in range(2):
        g = 32+e; u = 64+e
        rnd_bf16(a, g, 9)
        rnd_bf16(a, u, 9)
        a(f"""
        v_mul_f32 v9, v{g}, v{g}
        v_mul_f32 v9, v9, v{g}
        v_mov_b32 v10, 0x3d372713
        v_fma_f32 v9, v9, v10, v{g}
        v_mul_f32 v9, 0x40135761, v9
        v_exp_f32 v9, v9
        s_nop 0
        v_add_f32 v9, 1.0, v9
        v_rcp_f32 v9, v9
        s_nop 0
        v_fma_f32 v9, v9, -2.0, 1.0
        v_add_f32 v9, 1.0, v9
        v_mul_f32 v9, 0.5, v9
        v_mul_f32 v9, v9, v{g}
        """)
        rnd_bf16(a, 9, 10)
        a(f"v_mul_f32 v{g}, v9, v{u}")
        rnd_bf16(a, g, 10)
    a(f"""
    v_mov_b32 v34, s80
    v_mov_b32 v35, s81
    v_mul_u32_u24 v3, 896, v3
    v_and_b32 v4, 31, v0
    v_add_u32 v3, v3, v4
    s_lshl_b32 s56, s2, 5
    v_add_u32 v3, s56, v3
    v_lshlrev_b32 v3, 4, v3
    v_add_u32 v3, {G_ACT}, v3
    global_store_dwordx4 v3, v[32:35], s[42:43] sc1
L_sv_act_end:
    s_mov_b64 exec, s[64:65]
    """)
    stamp(a, 9)
    a(f"""
    v_cmp_gt_u32 vcc, 512, v0
    s_and_saveexec_b64 s[64:65], vcc
    v_lshlrev_b32 v4, 2, v0
    v_mov_b32 v5, 0
    ds_write_b32 v4, v5 offset:{L_ACT+14336}
    s_mov_b64 exec, s[64:65]
    v_lshlrev_b32 v4, 4, v0
    v_add_u32 v4, {G_ACT}, v4
    v_add_u32 v5, 16384, v4
    v_cmp_le_u32 vcc, 896, v0
    s_nop 1
    v_cndmask_b32 v6, 0, 1, vcc
    v_mul_u32_u24 v7, 896, v6
    v_sub_u32 v7, v0, v7
    v_lshlrev_b32 v7, 4, v7
    v_lshl_add_u32 v7, v6, 2, v7
    """)
    poll(a, "actA", [(112, 4, 0)], tmp=(2,3))
    a(f"""
    ds_write_b32 v7, v112 offset:{L_ACT}
    ds_write_b32 v7, v113 offset:{L_ACT+8}
    v_cmp_gt_u32 vcc, 768, v0
    s_and_saveexec_b64 s[64:65], vcc
    s_cbranch_execz L_sv_actb_end
    """)
    poll(a, "actB", [(112, 5, 0)], tmp=(2,3))
    a(f"""
    v_add_u32 v7, 128, v0
    v_lshlrev_b32 v7, 4, v7
    ds_write_b32 v7, v112 offset:{L_ACT+4}
    ds_write_b32 v7, v113 offset:{L_ACT+12}
L_sv_actb_end:
    s_mov_b64 exec, s[64:65]
    s_waitcnt lgkmcnt(0)
    s_barrier
    v_lshrrev_b32 v6, 1, v0
    v_lshlrev_b32 v4, 3, v6
    ds_read_b64 v[24:25], v4 offset:{L_ACT}
    ds_read_b64 v[26:27], v4 offset:{L_ACT+4096}
    ds_read_b64 v[28:29], v4 offset:{L_ACT+8192}
    ds_read_b64 v[30:31], v4 offset:{L_ACT+12288}
    """)
    zero(a, 32, 16)
    a("s_waitcnt lgkmcnt(0)")
    for i in range(4):
        fma_tile(a, 96+4*i, 32, 24+2*i, 25+2*i, 2)
    red_lanes(a, 32, 16, 1)
    swap_reduce16(a, 32)
    red_write(a, 32, 1, L_RED)
    a(f"""
    s_waitcnt lgkmcnt(0)
    s_barrier
    v_cmp_gt_u32 vcc, 32, v0
    s_and_saveexec_b64 s[64:65], vcc
    s_cbranch_execz L_sv_dn_end
    v_lshlrev_b32 v4, 2, v0
    """)
    for w in range(16):
        a(f"ds_read_b32 v{8+w}, v4 offset:{L_RED+w*128}")
    a(f"""
    v_lshrrev_b32 v4, 4, v0
    v_lshlrev_b32 v4, 3, v4
    v_and_b32 v5, 7, v0
    v_add_u32 v4, v4, v5
    s_lshl_b32 s56, s2, 4
    v_add_u32 v4, s56, v4
    v_bfe_u32 v5, v0, 3, 1
    v_mul_u32_u24 v5, 448, v5
    v_add_u32 v4, v4, v5
    v_lshlrev_b32 v5, 2, v4
    ds_read_b32 v30, v5 offset:{L_X1}
    ds_read_b32 v31, v5 offset:{L_MODN+10752}
    s_waitcnt lgkmcnt(0)
    """)
    for w in range(1, 16):
        a(f"v_add_f32 v8, v8, v{8+w}")
    rnd_bf16(a, 8, 9)
    a("v_mul_f32 v8, v8, v31")
    rnd_bf16(a, 8, 9)
    a("""
    v_add_f32 v8, v8, v30
    v_cvt_pk_bf16_f32 v8, v8, v8
    v_lshlrev_b32 v4, 1, v4
    global_store_short v4, v8, s[38:39]
L_sv_dn_end:
    s_mov_b64 exec, s[64:65]
L_sv_exit:
    """)
    stamp(a, 10)
    stamp_store(a, 10)
    a("s_endpgm")

def main(outpath):
    hdr = open("cdna_kernels/" + NAME + ".s.ref").read().split("\n")
    out = []
    for l in hdr:
        if l.startswith("; Override") or l.startswith("; grid=") or l.startswith("; @launch") or l.startswith(".amdgcn"):
            break
        out.append(l)
    out.append(f"; @launch grid=(256,1,1) block=(1024,1,1) lds={LDS_TOTAL}")
    out.append('.amdgcn_target "amdgcn-amd-amdhsa--gfx950"')
    out.append(".text")
    k = NAME + "_kernel"
    a = Asm()
    a("""
    s_cmp_ge_u32 s2, 256
    s_cbranch_scc1 L_exit
    s_load_dwordx16 s[16:31], s[0:1], 0
    s_load_dwordx8 s[32:39], s[0:1], 64
    s_load_dwordx4 s[40:43], s[0:1], 96
    """)
    stamp(a, 0)
    if os.environ.get("PREFETCH"):
        a("""
        s_getpc_b64 s[70:71]
        v_lshlrev_b32 v126, 4, v0
        v_add_u32 v127, 0x4000, v126
        global_load_dwordx4 v[120:123], v126, s[70:71]
        v_cmp_gt_u32 vcc, 400, v0
        s_and_saveexec_b64 s[72:73], vcc
        global_load_dwordx4 v[120:123], v127, s[70:71]
        s_mov_b64 exec, s[72:73]
        """)
    a("""
    s_cmp_ge_u32 s2, 32
    s_cbranch_scc1 L_stream
    """)
    service(a)
    stream(a)
    a("L_exit:\ns_endpgm")
    out.append(f".globl {k}\n.p2align 8\n.type {k},@function\n{k}:\n" + a.text())
    out.append('.section .rodata,"a"')
    out.append(f""".p2align 6
.amdhsa_kernel {k}
  .amdhsa_next_free_vgpr 128
  .amdhsa_next_free_sgpr 102
  .amdhsa_accum_offset 128
  .amdhsa_group_segment_fixed_size 0
  .amdhsa_kernarg_size 112
  .amdhsa_user_sgpr_count 2
  .amdhsa_user_sgpr_kernarg_segment_ptr 1
  .amdhsa_system_sgpr_workgroup_id_x 1
.end_amdhsa_kernel""")
    open(outpath, "w").write("\n".join(out) + "\n")

if __name__ == "__main__":
    main(sys.argv[1] if len(sys.argv) > 1 else "cdna_kernels/" + NAME + ".s")
```

```python
import sys, os
from asmlib import *
from gen1_lib import srd, rnd_bf16, wave_allsum, swap_reduce16, zero

NAME = "adaLN_cond__mha_block_cached__geglu_ffn__decode"
STAMPS = int(os.environ.get("STAMPS", "0"))
MAXPOLL = int(os.environ.get('MAXPOLL', '20000'))

G_MODC = 0x00000
G_Q    = 0x08000
G_MODN = 0x10000
G_PART = 0x20000
PART_STRIDE = 2112
G_ATT  = 0xA0000
G_DN   = 0xC0000
G_STAMP= 0x100000

L_A    = 0x0000
L_S    = 0x1000
L_NONCE= 0x2000
L_X1   = 0x2100
L_Y    = 0x2F00
L_ATTP = 0x3D00
L_MODN = 0x5900
L_ACTL = 0x9100
L_FIN  = 0x9300
L_RED  = 0xA100
LDS_TOTAL = 0xA100 + 57344

NT = 19
KWIN = int(os.environ.get('KWIN', '32'))
KTAIL = min(3, KWIN-1)
NVP = 5
KR = 32
VP = 108

def stamp(a, idx):
    if STAMPS:
        a(f"s_memrealtime s[{82+2*idx}:{83+2*idx}]")

def stamp_store(a, n):
    if not STAMPS: return
    a(f"""
    s_waitcnt lgkmcnt(0)
    v_cmp_eq_u32 vcc, 0, v0
    s_and_saveexec_b64 s[60:61], vcc
    s_lshl_b32 s56, s2, 7
    v_mov_b32 v4, s56
    v_add_u32 v4, {G_STAMP}, v4
    """)
    for i in range(n):
        a(f"""
        v_mov_b32 v8, s{82+2*i}
        v_mov_b32 v9, s{83+2*i}
        global_store_dwordx2 v4, v[8:9], s[42:43] offset:{8*i}
        """)
    a("s_mov_b64 exec, s[60:61]")

def poll(a, name, loads, tagl="s80", tagh="s81", tmp=(2,3), sleep=1):
    t0, t1 = tmp
    a(f"s_mov_b32 s79, {MAXPOLL}")
    a(f"L_poll_{name}:")
    for (d, va, off) in loads:
        a(f"global_load_dwordx4 {vr(d,4)}, v{va}, s[42:43] offset:{off} sc1")
    a("s_waitcnt vmcnt(0)")
    first = True
    for (d, va, off) in loads:
        if first:
            a(f"v_xor_b32 v{t0}, {tagl}, v{d+2}")
            first = False
        else:
            a(f"v_xor_b32 v{t1}, {tagl}, v{d+2}")
            a(f"v_or_b32 v{t0}, v{t0}, v{t1}")
        a(f"v_xor_b32 v{t1}, {tagh}, v{d+3}")
        a(f"v_or_b32 v{t0}, v{t0}, v{t1}")
    a(f"""
    v_cmp_ne_u32 vcc, 0, v{t0}
    s_cbranch_vccz L_pollok_{name}
    s_sleep {sleep}
    s_sub_u32 s79, s79, 1
    s_cmp_lg_u32 s79, 0
    s_cbranch_scc1 L_poll_{name}
L_pollok_{name}:
    """)

def fma_tile(a, w, acc, ap, t):
    for d in range(4):
        a(f"""
        v_lshlrev_b32 v{t}, 16, v{w+d}
        v_and_b32 v{t+1}, 0xffff0000, v{w+d}
        v_pk_fma_f32 v[{acc+2*d}:{acc+2*d+1}], v[{t}:{t+1}], v[{ap}:{ap+1}], v[{acc+2*d}:{acc+2*d+1}] op_sel:[0,0,0] op_sel_hi:[1,0,1]
        v_pk_fma_f32 v[{acc+8+2*d}:{acc+8+2*d+1}], v[{t}:{t+1}], v[{ap}:{ap+1}], v[{acc+8+2*d}:{acc+8+2*d+1}] op_sel:[0,1,0] op_sel_hi:[1,1,1]
        """)

def red_lanes(a, acc, n, nb):
    steps = []
    if nb <= 1: steps.append("quad_perm:[2,3,0,1]")
    if nb <= 2: steps.append("row_ror:4")
    if nb <= 3: steps.append("row_ror:8")
    for m in steps:
        a("s_nop 1")
        for i in range(n):
            a(f"v_add_f32_dpp v{acc+i}, v{acc+i}, v{acc+i} {m} row_mask:0xf bank_mask:0xf")

def red_write(a, acc, nb, base, va=4, vt=5):
    a(f"""
    v_lshrrev_b32 v{va}, 6, v0
    v_lshlrev_b32 v{va}, {6+nb}, v{va}
    v_and_b32 v{vt}, {(1<<nb)-1}, v0
    v_lshl_add_u32 v{va}, v{vt}, 6, v{va}
    v_bfe_u32 v{vt}, v0, 4, 2
    v_lshl_add_u32 v{va}, v{vt}, 4, v{va}
    ds_write_b128 v{va}, {vr(acc,4)} offset:{base}
    """)

def ln_stats(a, xs, T):
    a(f"v_add_f32 v{T}, v{xs}, v{xs+1}")
    for i in range(2, 7):
        a(f"v_add_f32 v{T}, v{T}, v{xs+i}")
    wave_allsum(a, T, T+1)
    a(f"v_mul_f32 v{T}, 0x3b124925, v{T}")
    a(f"v_sub_f32 v{T+2}, v{xs}, v{T}")
    a(f"v_mul_f32 v{T+3}, v{T+2}, v{T+2}")
    for i in range(1, 7):
        a(f"v_sub_f32 v{T+2}, v{xs+i}, v{T}")
        a(f"v_fmac_f32 v{T+3}, v{T+2}, v{T+2}")
    wave_allsum(a, T+3, T+1)
    a(f"v_mul_f32 v{T+3}, 0x3b124925, v{T+3}")
    rnd_bf16(a, T, T+1)
    rnd_bf16(a, T+3, T+1)
    a(f"v_add_f32 v{T+3}, 0x3727c5ac, v{T+3}")
    rnd_bf16(a, T+3, T+1)
    a(f"v_sqrt_f32 v{T+3}, v{T+3}")
    a("s_nop 0")
    rnd_bf16(a, T+3, T+1)
    a(f"v_rcp_f32 v{T+4}, v{T+3}")
    a("s_nop 0")

def ln_norm(a, x, d, T, t):
    a(f"v_sub_f32 v{t}, v{x}, v{T}")
    rnd_bf16(a, t, t+1)
    a(f"v_mul_f32 v{d}, v{t}, v{T+4}")
    a(f"v_fma_f32 v{t+1}, -v{d}, v{T+3}, v{t}")
    a(f"v_fmac_f32 v{d}, v{t+1}, v{T+4}")
    rnd_bf16(a, d, t+1)

def stream(a):
    a(f"""
L_stream:
    {"s_endpgm" if os.environ.get("NOSTREAM") else ""}
    s_sub_u32 s56, s2, 32
    s_mul_hi_u32 s57, s56, 0x24924925
    s_mul_i32 s58, s57, 7
    s_sub_u32 s58, s56, s58
    s_lshl_b32 s59, s57, 21
    s_mul_i32 s61, s58, 311296
    v_lshlrev_b32 v1, 4, v0
    v_add_u32 v1, s61, v1
    s_waitcnt lgkmcnt(0)
    s_add_u32 s44, s18, s59
    s_addc_u32 s45, s19, 0
    s_and_b32 s45, s45, 0xffff
    s_mov_b32 s46, 0x200000
    s_mov_b32 s47, 0x00020000
    s_add_u32 s48, s20, s59
    s_addc_u32 s49, s21, 0
    s_and_b32 s49, s49, 0xffff
    s_mov_b32 s50, 0x200000
    s_mov_b32 s51, 0x00020000
    s_mov_b32 s60, 0
    """)
    for t in range(NT):
        if t >= KWIN:
            a(f"s_waitcnt vmcnt({KWIN-1})")
        a(f"buffer_load_dwordx4 {vr(KR+4*t,4)}, v1, s[44:47], s60 offen nt")
        if t < NT-1:
            a("s_add_u32 s60, s60, 16384")
    a(f"""
    v_and_b32 v2, 31, v0
    v_lshlrev_b32 v2, 5, v2
    s_lshl_b32 s61, s57, 10
    v_add_u32 v2, s61, v2
    v_add_u32 v3, {G_Q}, v2
    v_mov_b32 v31, 0
    s_mov_b32 s60, 0
    s_waitcnt vmcnt({KTAIL})
    global_load_dwordx2 v[12:13], v31, s[40:41] sc1
    global_load_dwordx4 v[4:7], v3, s[42:43] sc1
    global_load_dwordx4 v[8:11], v3, s[42:43] offset:16 sc1
    """)
    for t in range(NVP):
        a(f"buffer_load_dwordx4 {vr(VP+4*t,4)}, v1, s[48:51], s60 offen nt")
        a("s_add_u32 s60, s60, 16384")
    a(f"""
    s_mov_b32 s79, {MAXPOLL}
    s_waitcnt vmcnt({NVP})
L_st_chk:
    v_xor_b32 v14, v12, v6
    v_xor_b32 v15, v13, v7
    v_xor_b32 v16, v12, v10
    v_xor_b32 v17, v13, v11
    v_or3_b32 v14, v14, v15, v16
    v_or_b32 v14, v14, v17
    v_cmp_eq_u32 s[62:63], 0, v12
    v_cmp_ne_u32 vcc, 0, v14
    s_or_b64 vcc, vcc, s[62:63]
    s_cbranch_vccz L_st_ok
    s_sub_u32 s79, s79, 1
    s_cmp_eq_u32 s79, 0
    s_cbranch_scc1 L_st_ok
    s_sleep 4
    global_load_dwordx2 v[12:13], v31, s[40:41] sc1
    global_load_dwordx4 v[4:7], v3, s[42:43] sc1
    global_load_dwordx4 v[8:11], v3, s[42:43] offset:16 sc1
    s_waitcnt vmcnt(0)
    s_branch L_st_chk
L_st_ok:
    v_readfirstlane_b32 s80, v12
    v_readfirstlane_b32 s81, v13
    """)
    stamp(a, 1)
    qf = [4, 5, 8, 9]
    S = 12
    for t in range(NT):
        k = KR + 4*t
        a(f"v_dot2_f32_bf16 v{S+t}, v{k}, v{qf[0]}, 0")
        for d in range(1, 4):
            a(f"v_dot2_f32_bf16 v{S+t}, v{k+d}, v{qf[d]}, v{S+t}")
        if t + NVP < NT:
            a(f"buffer_load_dwordx4 {vr(k,4)}, v1, s[48:51], s60 offen nt")
            a("s_add_u32 s60, s60, 16384")
    TMP = 88
    a("s_nop 1")
    for m in ["quad_perm:[1,0,3,2]", "quad_perm:[2,3,0,1]", "row_half_mirror", "row_mirror"]:
        for t in range(NT):
            a(f"v_add_f32_dpp v{S+t}, v{S+t}, v{S+t} {m} row_mask:0xf bank_mask:0xf")
        a("s_nop 1")
    for t in range(NT):
        a(f"v_mov_b32 v{TMP+t}, v{S+t}")
    a("s_nop 1")
    for t in range(NT):
        a(f"v_permlane16_swap_b32 v{S+t}, v{TMP+t}")
    for t in range(NT):
        a(f"v_add_f32 v{S+t}, v{S+t}, v{TMP+t}")
    for t in range(NT):
        rnd_bf16(a, S+t, 2)
    a("""
    s_mov_b32 s62, 0x3db8aa3b
    s_cmp_eq_u32 s58, 6
    s_cselect_b32 s63, 0xff000000, 0
    """)
    for t in range(NT):
        a(f"v_mul_f32 v{S+t}, s62, v{S+t}")
    for t in range(14, NT):
        a(f"v_add_f32 v{S+t}, s63, v{S+t}")
    a(f"v_max_f32 v2, v{S}, v{S+1}")
    for t in range(2, NT):
        a(f"v_max_f32 v2, v2, v{S+t}")
    a("""
    v_mov_b32 v3, v2
    s_nop 1
    v_permlane32_swap_b32 v2, v3
    v_max_f32 v2, v2, v3
    """)
    for t in range(NT):
        a(f"v_sub_f32 v{S+t}, v{S+t}, v2")
        a(f"v_exp_f32 v{S+t}, v{S+t}")
    a("s_nop 0")
    a(f"v_add_f32 v3, v{S}, v{S+1}")
    for t in range(2, NT):
        a(f"v_add_f32 v3, v3, v{S+t}")
    a("""
    v_mov_b32 v6, v3
    s_nop 1
    v_permlane32_swap_b32 v3, v6
    v_add_f32 v3, v3, v6
    """)
    ACC = 88
    zero(a, ACC, 8)
    for t in range(NT):
        k = VP + 4*t if t < NVP else KR + 4*(t-NVP)
        a(f"s_waitcnt vmcnt({NT-1-t})")
        for d in range(4):
            a(f"""
            v_lshlrev_b32 v96, 16, v{k+d}
            v_and_b32 v97, 0xffff0000, v{k+d}
            v_pk_fma_f32 v[{ACC+2*d}:{ACC+2*d+1}], v[96:97], v[{S+t}:{S+t+1}], v[{ACC+2*d}:{ACC+2*d+1}] op_sel:[0,{(S+t)&1},0] op_sel_hi:[1,{(S+t)&1},1]
            """.replace(f"v[{S+t}:{S+t+1}]", f"v[{(S+t)&~1}:{((S+t)&~1)+1}]"))
    stamp(a, 2)
    a("s_nop 1")
    for i in range(4):
        a(f"v_permlane32_swap_b32 v{ACC+i}, v{ACC+4+i}")
    for i in range(4):
        a(f"v_add_f32 v{ACC+i}, v{ACC+i}, v{ACC+4+i}")
    a(f"""
    v_and_b32 v4, 31, v0
    v_lshlrev_b32 v4, 5, v4
    v_bfe_u32 v5, v0, 5, 1
    v_lshl_add_u32 v4, v5, 4, v4
    v_lshrrev_b32 v5, 6, v0
    v_lshl_add_u32 v4, v5, 10, v4
    ds_write_b128 v4, {vr(ACC,4)}
    v_lshlrev_b32 v5, 3, v5
    ds_write_b64 v5, v[2:3] offset:16384
    s_waitcnt lgkmcnt(0)
    s_barrier
    v_cmp_gt_u32 vcc, 128, v0
    s_and_saveexec_b64 s[60:61], vcc
    s_cbranch_execz L_st_end
    v_mov_b32 v5, 0
    """)
    for w in range(8):
        a(f"ds_read_b128 {vr(32+4*w,4)}, v5 offset:{16384+16*w}")
    a("v_lshlrev_b32 v4, 3, v0")
    for w in range(16):
        a(f"ds_read_b64 {vr(64+2*w,2)}, v4 offset:{w*1024}")
    a("s_waitcnt lgkmcnt(0)")
    a("v_max_f32 v8, v32, v34")
    for w in range(2, 16):
        a(f"v_max_f32 v8, v8, v{32+2*w}")
    zero(a, 9, 1)
    zero(a, 12, 2)
    for w in range(16):
        a(f"""
        v_sub_f32 v11, v{32+2*w}, v8
        v_exp_f32 v11, v11
        s_nop 0
        v_fmac_f32 v9, v11, v{33+2*w}
        v_fmac_f32 v12, v11, v{64+2*w}
        v_fmac_f32 v13, v11, v{65+2*w}
        """)
    a(f"""
    s_mul_i32 s56, s56, {PART_STRIDE}
    s_add_u32 s56, s56, {G_PART}
    v_lshlrev_b32 v4, 4, v0
    v_add_u32 v4, s56, v4
    v_mov_b32 v14, s80
    v_mov_b32 v15, s81
    v_mov_b32 v10, s80
    v_mov_b32 v11, s81
    global_store_dwordx4 v4, v[12:15], s[42:43] sc1
    v_cmp_eq_u32 vcc, 0, v0
    s_and_b64 exec, exec, vcc
    global_store_dwordx4 v4, v[8:11], s[42:43] offset:2048 sc1
L_st_end:
    s_mov_b64 exec, s[60:61]
    """)
    stamp(a, 3)
    stamp_store(a, 4)
    a("s_endpgm")

def service(a):
    a("""
    v_lshrrev_b32 v1, 6, v0
    s_nop 0
    v_readfirstlane_b32 s60, v1      ; wave
    v_and_b32 v1, 63, v0
    v_mov_b32 v31, 0
    s_waitcnt lgkmcnt(0)
    """)
    srd(a, 44, 34, 1792)
    srd(a, 48, 36, 448*5376)
    srd(a, 52, 22, 448*8192)
    a("""
    s_cmp_lg_u32 s60, 15
    s_cbranch_scc1 L_sv_nononce
    s_memrealtime s[62:63]
    s_waitcnt lgkmcnt(0)
    s_or_b32 s62, s62, 1
    v_mov_b32 v8, s62
    v_mov_b32 v9, s63
    v_mov_b32 v10, 0
    v_mov_b32 v11, 0
    s_mov_b64 s[64:65], exec
    s_mov_b64 exec, 1
    global_atomic_cmpswap_x2 v[12:13], v31, v[8:11], s[40:41] sc0 sc1
    s_mov_b64 exec, s[64:65]
L_sv_nononce:
    s_cmp_ge_u32 s60, 2
    s_cbranch_scc1 L_sv_nox
    s_mul_i32 s61, s60, 896
    v_lshl_add_u32 v2, v1, 1, s61
    """)
    for i in range(7):
        a(f"global_load_ushort v{60+i}, v2, s[16:17] offset:{i*128}")
    a("""
L_sv_nox:
    v_lshlrev_b32 v2, 1, v0
    buffer_load_ushort v28, v2, s[44:47], 0 offen
    ; wmodc: cg=t&7 (v30), rg=t>>3 (v6); cgp = s%14, kh = s/14
    v_and_b32 v30, 7, v0
    v_lshrrev_b32 v6, 3, v0
    v_mul_u32_u24 v3, 5376, v6
    v_lshl_add_u32 v3, v30, 4, v3
    s_cmp_ge_u32 s2, 14
    s_cselect_b32 s56, 1, 0              ; kh
    s_mul_i32 s57, s56, 14
    s_sub_u32 s57, s2, s57               ; cgp
    s_mul_i32 s58, s56, 1204224          ; kh*224*5376
    s_lshl_b32 s59, s57, 7
    s_add_u32 s58, s58, s59
    s_cmp_ge_u32 s2, 28
    s_cselect_b32 s58, 0x7f000000, s58
    s_add_u32 s59, s58, 688128
    v_mov_b32 v4, 0x7f000000
    v_cmp_gt_u32 vcc, 96, v6
    s_nop 1
    v_cndmask_b32 v4, v4, v3, vcc
    buffer_load_dwordx4 v[16:19], v3, s[48:51], s58 offen nt
    buffer_load_dwordx4 v[20:23], v4, s[48:51], s59 offen nt
    s_lshl_b32 s61, s2, 6
    v_mov_b32 v29, s61
    global_load_dword v29, v29, s[42:43] sc1
    v_cmp_le_u32 vcc, 448, v0
    s_nop 1
    v_cndmask_b32 v2, 0, 1, vcc
    v_mul_u32_u24 v3, 448, v2
    v_sub_u32 v3, v0, v3
    v_lshl_add_u32 v2, v3, 1, v2
    v_lshlrev_b32 v2, 2, v2
    v_lshlrev_b32 v3, 2, v0
    v_cmp_le_u32 vcc, 896, v0
    s_nop 1
    v_cndmask_b32 v2, v2, v3, vcc
    v_mov_b32 v5, 0
    s_cmp_ge_u32 s60, 14
    s_cbranch_scc1 L_sv_nocwait
    s_waitcnt vmcnt(3)
    v_lshlrev_b32 v5, 16, v28
L_sv_nocwait:
    v_mul_f32 v3, 0xbfb8aa3b, v5
    v_exp_f32 v3, v3
    s_nop 0
    v_add_f32 v3, 1.0, v3
    v_rcp_f32 v3, v3
    s_nop 0
    v_mul_f32 v5, v5, v3
    """)
    rnd_bf16(a, 5, 3)
    a(f"""
    ds_write_b32 v2, v5 offset:{L_S}
    s_cmp_lt_u32 s60, 14
    s_cbranch_scc1 L_sv_nopad
    ds_write_b32 v2, v5 offset:{L_A}
L_sv_nopad:
    s_waitcnt lgkmcnt(0)
    s_barrier
    v_lshrrev_b32 v7, 4, v0
    v_lshlrev_b32 v3, 13, v7
    v_and_b32 v4, 15, v0
    v_lshl_add_u32 v3, v4, 4, v3
    s_lshl_b32 s61, s2, 8
    """)
    for i in range(7):
        a(f"buffer_load_dwordx4 {vr(96+4*i,4)}, v3, s[52:55], s61 offen nt")
        a("s_add_u32 s61, s61, 524288")
    a(f"""
    s_mul_i32 s61, s56, 1792
    v_lshl_add_u32 v4, v6, 3, s61
    ds_read_b64 v[24:25], v4 offset:{L_S}
    ds_read_b64 v[26:27], v4 offset:{L_S+1024}
    """)
    zero(a, 32, 16)
    a("s_waitcnt vmcnt(8) lgkmcnt(0)")
    stamp(a, 1)
    fma_tile(a, 16, 32, 24, 28)
    fma_tile(a, 20, 32, 26, 28)
    red_lanes(a, 32, 16, 3)
    swap_reduce16(a, 32)
    red_write(a, 32, 3, L_RED)
    a(f"""
    s_cmp_lg_u32 s60, 15
    s_cbranch_scc1 L_sv_nononce2
    v_cmp_eq_u32 vcc, 0, v12
    s_nop 1
    v_cndmask_b32 v12, v12, v8, vcc
    v_cndmask_b32 v13, v13, v9, vcc
    s_mov_b64 s[64:65], exec
    s_mov_b64 exec, 1
    ds_write_b64 v31, v[12:13] offset:{L_NONCE}
    s_mov_b64 exec, s[64:65]
L_sv_nononce2:
    s_cmp_ge_u32 s60, 2
    s_cbranch_scc1 L_sv_noy
    """)
    for i in range(7):
        a(f"v_lshlrev_b32 v{60+i}, 16, v{60+i}")
    a(f"""
    s_mul_i32 s61, s60, 1792
    v_lshl_add_u32 v4, v1, 2, s61
    """)
    for i in range(7):
        a(f"ds_write_b32 v4, v{60+i} offset:{L_X1+i*256}")
    ln_stats(a, 60, 8)
    a(f"""
    v_lshlrev_b32 v4, 3, v1
    s_lshl_b32 s61, s60, 2
    v_add_u32 v4, s61, v4
    """)
    for i in range(7):
        ln_norm(a, 60+i, 14, 8, 16)
        a(f"ds_write_b32 v4, v14 offset:{L_Y+i*512}")
    a(f"""
L_sv_noy:
    s_waitcnt lgkmcnt(0)
    """)
    if os.environ.get("WSTAMP"):
        a(f"""
        s_memrealtime s[70:71]
        s_waitcnt lgkmcnt(0)
        s_lshl_b32 s72, s2, 8
        s_lshl_b32 s73, s60, 4
        s_add_u32 s72, s72, s73
        s_add_u32 s72, s72, {G_STAMP+0x10000}
        v_mov_b32 v124, s72
        v_mov_b32 v126, s70
        v_mov_b32 v127, s71
        global_store_dwordx2 v124, v[126:127], s[42:43]
        """)
    a(f"""
    s_barrier
    ds_read_b64 v[2:3], v31 offset:{L_NONCE}
    s_waitcnt lgkmcnt(0)
    v_readfirstlane_b32 s80, v2
    v_readfirstlane_b32 s81, v3
    s_cmp_ge_u32 s2, 28
    s_cbranch_scc1 L_sv_modc_done
    v_cmp_gt_u32 vcc, 64, v0
    s_and_saveexec_b64 s[64:65], vcc
    s_cbranch_execz L_sv_modc_end
    v_lshrrev_b32 v2, 3, v0
    v_lshlrev_b32 v2, 4, v2
    v_and_b32 v3, 7, v0
    v_add_u32 v2, v2, v3
    v_lshlrev_b32 v2, 2, v2
    """)
    for w in range(16):
        a(f"ds_read_b32 v{32+w}, v2 offset:{L_RED+w*512}")
        a(f"ds_read_b32 v{48+w}, v2 offset:{L_RED+w*512+32}")
    a("s_waitcnt lgkmcnt(0)")
    for w in range(1, 16):
        a(f"v_add_f32 v32, v32, v{32+w}")
        a(f"v_add_f32 v48, v48, v{48+w}")
    a(f"""
    v_mov_b32 v33, v48
    v_mov_b32 v34, s80
    v_mov_b32 v35, s81
    s_mul_i32 s61, s56, 896
    s_lshl_b32 s62, s57, 6
    s_add_u32 s61, s61, s62
    v_add_u32 v3, s61, v0
    v_lshlrev_b32 v3, 4, v3
    global_store_dwordx4 v3, v[32:35], s[42:43] offset:{G_MODC} sc1
L_sv_modc_end:
    s_mov_b64 exec, s[64:65]
L_sv_modc_done:
    """)
    stamp(a, 2)
    a(f"""
    v_cmp_gt_u32 vcc, 448, v0
    s_and_saveexec_b64 s[64:65], vcc
    s_cbranch_execz L_sv_h_end
    v_lshlrev_b32 v4, 4, v0
    v_add_u32 v5, 7168, v4
    v_add_u32 v6, 14336, v4
    v_add_u32 v29, 21504, v4
    v_lshlrev_b32 v30, 3, v0
    ds_read_b64 v[24:25], v30 offset:{L_Y}
    """)
    poll(a, "modc", [(8, 4, G_MODC), (12, 5, G_MODC), (16, 6, G_MODC), (20, 29, G_MODC)], tmp=(2,3))
    a("s_waitcnt lgkmcnt(0)")
    for b in range(2):
        a(f"v_add_f32 v{8+b}, v{8+b}, v{16+b}")
        rnd_bf16(a, 8+b, 2)
        a(f"v_add_f32 v{12+b}, v{12+b}, v{20+b}")
        rnd_bf16(a, 12+b, 2)
        a(f"v_add_f32 v{12+b}, 1.0, v{12+b}")
        rnd_bf16(a, 12+b, 2)
        a(f"v_mul_f32 v{12+b}, v{24+b}, v{12+b}")
        rnd_bf16(a, 12+b, 2)
        a(f"v_add_f32 v{12+b}, v{12+b}, v{8+b}")
        rnd_bf16(a, 12+b, 2)
    a(f"""
    ds_write_b64 v30, v[12:13] offset:{L_A}
L_sv_h_end:
    s_mov_b64 exec, s[64:65]
    s_waitcnt lgkmcnt(0)
    s_barrier
    v_lshlrev_b32 v4, 3, v7
    """)
    stamp(a, 3)
    for i in range(7):
        a(f"ds_read_b64 {vr(8+2*i,2)}, v4 offset:{L_A+i*512}")
    zero(a, 32, 16)
    a("s_waitcnt vmcnt(0) lgkmcnt(0)")
    for i in range(7):
        fma_tile(a, 96+4*i, 32, 8+2*i, 28)
    swap_reduce16(a, 32)
    red_write(a, 32, 4, L_RED)
    a(f"""
    s_waitcnt lgkmcnt(0)
    s_barrier
    v_cmp_gt_u32 vcc, 64, v0
    s_and_saveexec_b64 s[64:65], vcc
    s_cbranch_execz L_sv_q_end
    v_bfe_u32 v2, v0, 1, 4
    v_lshlrev_b32 v2, 4, v2
    v_lshrrev_b32 v3, 5, v0
    v_lshl_add_u32 v2, v3, 3, v2
    v_and_b32 v4, 1, v0
    v_lshl_add_u32 v2, v4, 2, v2
    v_lshlrev_b32 v2, 2, v2
    """)
    for w in range(16):
        a(f"ds_read_b128 {vr(32+4*w,4)}, v2 offset:{L_RED+w*1024}")
    a("s_waitcnt lgkmcnt(0)")
    for w in range(1, 16):
        a(f"v_pk_add_f32 v[32:33], v[32:33], v[{32+4*w}:{33+4*w}]")
        a(f"v_pk_add_f32 v[34:35], v[34:35], v[{34+4*w}:{35+4*w}]")
    a(f"""
    v_cvt_pk_bf16_f32 v32, v32, v33
    v_cvt_pk_bf16_f32 v33, v34, v35
    v_mov_b32 v34, s80
    v_mov_b32 v35, s81
    v_lshlrev_b32 v3, 10, v3
    v_and_b32 v4, 31, v0
    v_add_u32 v3, v3, v4
    s_lshl_b32 s61, s2, 5
    v_add_u32 v3, s61, v3
    v_lshlrev_b32 v3, 4, v3
    v_add_u32 v3, {G_Q}, v3
    global_store_dwordx4 v3, v[32:35], s[42:43] sc1
L_sv_q_end:
    s_mov_b64 exec, s[64:65]
    """)
    stamp(a, 4)
    srd(a, 44, 24, 4096*896)
    srd(a, 52, 28, 448*3584)
    a("""
    v_and_b32 v2, 7, v0
    v_lshrrev_b32 v6, 3, v0
    v_mul_u32_u24 v3, 5376, v6
    v_lshl_add_u32 v3, v2, 4, v3
    s_lshl_b32 s61, s2, 7
    s_add_u32 s61, s61, 1792
    s_cmp_ge_u32 s2, 28
    s_cselect_b32 s61, 0x7f000000, s61
    """)
    for i in range(4):
        a(f"buffer_load_dwordx4 {vr(96+4*i,4)}, v3, s[48:51], s61 offen nt")
        if i < 3: a("s_add_u32 s61, s61, 688128")
    a("""
    v_and_b32 v4, 31, v0
    v_lshrrev_b32 v5, 5, v0
    v_mul_u32_u24 v3, 896, v5
    v_lshl_add_u32 v3, v4, 4, v3
    v_cmp_le_u32 vcc, 28, v4
    v_mov_b32 v24, 0x7f000000
    s_nop 0
    v_cndmask_b32 v3, v3, v24, vcc
    s_lshr_b32 s61, s2, 1
    s_mul_i32 s61, s61, 229376
    s_and_b32 s62, s2, 1
    s_mul_i32 s62, s62, 448
    s_add_u32 s61, s61, s62
    """)
    for i in range(8):
        a(f"buffer_load_dwordx4 {vr(32+4*i,4)}, v3, s[44:47], s61 offen nt")
        if i < 7: a("s_add_u32 s61, s61, 28672")
    srd(a, 44, 30, 448*3584)
    a("""
    v_mul_u32_u24 v3, 3584, v6
    v_lshl_add_u32 v3, v2, 4, v3
    s_lshl_b32 s61, s2, 7
    s_cmp_ge_u32 s2, 28
    s_cselect_b32 s61, 0x7f000000, s61
    """)
    for i in range(4):
        a(f"buffer_load_dwordx4 {vr(64+4*i,4)}, v3, s[52:55], s61 offen nt")
        a(f"buffer_load_dwordx4 {vr(80+4*i,4)}, v3, s[44:47], s61 offen nt")
        if i < 3: a("s_add_u32 s61, s61, 458752")
    srd(a, 52, 32, 1792*896)
    a("""
    v_lshlrev_b32 v3, 4, v1
    v_cmp_le_u32 vcc, 56, v1
    v_mov_b32 v24, 0x7f000000
    s_nop 0
    v_cndmask_b32 v3, v3, v24, vcc
    s_lshl_b32 s61, s2, 6
    s_add_u32 s61, s61, s60
    s_mul_i32 s61, s61, 896
    s_cmp_ge_u32 s2, 28
    s_cselect_b32 s61, 0x7f000000, s61
    """)
    for i in range(4):
        a(f"buffer_load_dwordx4 {vr(112+4*i,4)}, v3, s[52:55], s61 offen nt")
        if i < 3: a("s_add_u32 s61, s61, 14336")
    a(f"""
    v_lshlrev_b32 v4, 3, v6
    ds_read_b64 v[24:25], v4 offset:{L_S}
    ds_read_b64 v[26:27], v4 offset:{L_S+1024}
    ds_read_b64 v[28:29], v4 offset:{L_S+2048}
    ds_read_b64 v[30:31], v4 offset:{L_S+3072}
    """)
    zero(a, 8, 16)
    a("s_waitcnt vmcnt(20) lgkmcnt(0)")
    for i in range(4):
        fma_tile(a, 96+4*i, 8, 24+2*i, 2)
    red_lanes(a, 8, 16, 3)
    swap_reduce16(a, 8)
    red_write(a, 8, 3, L_RED)
    a(f"""
    s_waitcnt lgkmcnt(0)
    s_barrier
    s_cmp_ge_u32 s2, 28
    s_cbranch_scc1 L_sv_modn_done
    v_cmp_gt_u32 vcc, 64, v0
    s_and_saveexec_b64 s[64:65], vcc
    s_cbranch_execz L_sv_modn_end
    v_lshrrev_b32 v2, 3, v0
    v_lshlrev_b32 v2, 4, v2
    v_and_b32 v3, 7, v0
    v_add_u32 v2, v2, v3
    v_lshlrev_b32 v2, 2, v2
    """)
    for w in range(16):
        a(f"ds_read_b32 v{8+w}, v2 offset:{L_RED+w*512}")
        a(f"ds_read_b32 v{96+w}, v2 offset:{L_RED+w*512+32}")
    a("s_waitcnt lgkmcnt(0)")
    for w in range(1, 16):
        a(f"v_add_f32 v8, v8, v{8+w}")
        a(f"v_add_f32 v96, v96, v{96+w}")
    rnd_bf16(a, 8, 4)
    rnd_bf16(a, 96, 4)
    a(f"""
    v_mov_b32 v9, v96
    v_mov_b32 v10, s80
    v_mov_b32 v11, s81
    s_lshl_b32 s61, s2, 6
    v_add_u32 v3, s61, v0
    v_lshlrev_b32 v3, 4, v3
    v_add_u32 v3, {G_MODN}, v3
    global_store_dwordx4 v3, v[8:11], s[42:43] sc1
L_sv_modn_end:
    s_mov_b64 exec, s[64:65]
L_sv_modn_done:
    v_mov_b32 v31, 0
    s_cmp_lt_u32 s60, 8
    s_cbranch_scc1 L_sv_modn_skip
    s_cmp_ge_u32 s60, 12
    s_cbranch_scc1 L_sv_modn_skip
    s_sub_u32 s61, s60, 8
    s_mul_i32 s62, s61, 7168
    v_lshlrev_b32 v4, 4, v1
    v_add_u32 v4, s62, v4
    v_add_u32 v4, {G_MODN}, v4
    v_add_u32 v5, 4096, v4
    s_mul_i32 s62, s61, 3584
    v_lshl_add_u32 v6, v1, 2, s62
    """)
    regs = [8, 12, 16, 20, 24, 96, 100]
    poll(a, "modn", [(regs[i], 4 if i < 4 else 5, (i%4)*1024) for i in range(7)], tmp=(2,3))
    for i in range(7):
        a(f"ds_write_b32 v6, v{regs[i]} offset:{L_MODN+i*256}")
        a(f"ds_write_b32 v6, v{regs[i]+1} offset:{L_MODN+1792+i*256}")
    a("L_sv_modn_skip:")
    stamp(a, 5)
    a(f"""
    s_cmp_lt_u32 s60, 4
    s_cbranch_scc1 L_sv_part_skip
    s_cmp_ge_u32 s60, 8
    s_cbranch_scc1 L_sv_part_skip
    s_lshr_b32 s61, s2, 1
    v_bfe_u32 v2, v0, 7, 1
    v_lshlrev_b32 v2, 4, v2
    v_add_u32 v2, s61, v2
    v_mul_u32_u24 v2, {7*PART_STRIDE}, v2
    v_add_u32 v2, {G_PART}, v2
    v_and_b32 v3, 127, v0
    v_lshl_add_u32 v3, v3, 4, v2
    v_add_u32 v4, {2*PART_STRIDE}, v3
    v_add_u32 v5, {4*PART_STRIDE}, v3
    v_add_u32 v6, {6*PART_STRIDE}, v3
    v_add_u32 v25, 2048, v2
    v_add_u32 v26, {2048+2*PART_STRIDE}, v2
    v_add_u32 v27, {2048+4*PART_STRIDE}, v2
    v_add_u32 v28, {2048+6*PART_STRIDE}, v2
    """)
    mlr = [8, 12, 16, 20, 96, 100, 104]
    mll = [(mlr[0], 25, 0), (mlr[1], 25, PART_STRIDE), (mlr[2], 26, 0), (mlr[3], 26, PART_STRIDE),
           (mlr[4], 27, 0), (mlr[5], 27, PART_STRIDE), (mlr[6], 28, 0)]
    poll(a, "ml", mll, tmp=(29,30), sleep=8)
    a(f"v_max_f32 v29, v{mlr[0]}, v{mlr[1]}")
    for j in range(2, 7):
        a(f"v_max_f32 v29, v29, v{mlr[j]}")
    for j in range(7):
        a(f"v_sub_f32 v{mlr[j]}, v{mlr[j]}, v29")
        a(f"v_exp_f32 v{mlr[j]}, v{mlr[j]}")
    a("s_nop 0")
    a(f"v_mul_f32 v29, v{mlr[0]}, v{mlr[0]+1}")
    for j in range(1, 7):
        a(f"v_fmac_f32 v29, v{mlr[j]}, v{mlr[j]+1}")
    wj = [10, 11, 14, 15, 18, 19, 22]
    a(f"v_mov_b32 v23, v{mlr[3]}")
    a(f"v_mov_b32 v10, v{mlr[0]}")
    a(f"v_mov_b32 v11, v{mlr[1]}")
    a(f"v_mov_b32 v14, v{mlr[2]}")
    a(f"v_mov_b32 v15, v23")
    a(f"v_mov_b32 v18, v{mlr[4]}")
    a(f"v_mov_b32 v19, v{mlr[5]}")
    a(f"v_mov_b32 v22, v{mlr[6]}")
    zero(a, 8, 2)
    poll(a, "pa", [(96, 3, 0), (100, 3, PART_STRIDE), (104, 4, 0), (108, 4, PART_STRIDE)], tmp=(30,31))
    for j in range(4):
        a(f"v_fmac_f32 v8, v{wj[j]}, v{96+4*j}")
        a(f"v_fmac_f32 v9, v{wj[j]}, v{97+4*j}")
    poll(a, "pb", [(96, 5, 0), (100, 5, PART_STRIDE), (104, 6, 0)], tmp=(30,31))
    for j in range(3):
        a(f"v_fmac_f32 v8, v{wj[4+j]}, v{96+4*j}")
        a(f"v_fmac_f32 v9, v{wj[4+j]}, v{97+4*j}")
    a("""
    v_rcp_f32 v30, v29
    s_nop 0
    v_mul_f32 v12, v8, v30
    v_fma_f32 v13, -v12, v29, v8
    v_fmac_f32 v12, v13, v30
    v_mul_f32 v16, v9, v30
    v_fma_f32 v13, -v16, v29, v9
    v_fmac_f32 v16, v13, v30
    """)
    rnd_bf16(a, 12, 13)
    rnd_bf16(a, 16, 13)
    a(f"""
    v_and_b32 v3, 127, v0
    v_lshlrev_b32 v3, 4, v3
    v_bfe_u32 v2, v0, 7, 1
    v_lshl_add_u32 v3, v2, 2, v3
    ds_write_b32 v3, v12 offset:{L_A}
    ds_write_b32 v3, v16 offset:{L_A+8}
    v_mov_b32 v31, 0
L_sv_part_skip:
    s_waitcnt lgkmcnt(0)
    s_barrier
    """)
    stamp(a, 6)
    a(f"""
    v_lshrrev_b32 v5, 5, v0
    v_lshlrev_b32 v4, 3, v5
    """)
    for i in range(7):
        a(f"ds_read_b64 {vr(2+0,2) if False else vr(96+2*i,2)}, v4 offset:{L_A+i*256}")
    a(f"ds_read_b64 v[110:111], v4 offset:{L_A+7*256}")
    zero(a, 8, 16)
    a("s_waitcnt vmcnt(0) lgkmcnt(0)")
    for i in range(8):
        fma_tile(a, 32+4*i, 8, 96+2*i if i < 7 else 110, 6)
    a("s_nop 1")
    for i in range(8):
        a(f"v_permlane32_swap_b32 v{8+i}, v{16+i}")
    for i in range(8):
        a(f"v_add_f32 v{8+i}, v{8+i}, v{16+i}")
    a(f"""
    v_lshlrev_b32 v4, 5, v0
    ds_write_b128 v4, v[8:11] offset:{L_RED}
    ds_write_b128 v4, v[12:15] offset:{L_RED+16}
    s_waitcnt lgkmcnt(0)
    s_barrier
    s_cmp_ge_u32 s60, 4
    s_cbranch_scc1 L_sv_att_skip
    v_and_b32 v3, 127, v0
    v_cmp_gt_u32 vcc, 112, v3
    s_and_saveexec_b64 s[64:65], vcc
    s_cbranch_execz L_sv_att_end
    v_bfe_u32 v2, v0, 7, 1
    v_lshlrev_b32 v4, 10, v2
    v_lshl_add_u32 v4, v3, 3, v4
    v_add_u32 v5, 16384, v4
    """)
    for w in range(16):
        a(f"ds_read_b64 {vr(32+2*w,2)}, v{4 if w < 8 else 5} offset:{L_RED+(w%8)*2048}")
    a("s_waitcnt lgkmcnt(0)")
    for w in range(1, 16):
        a(f"v_pk_add_f32 v[32:33], v[32:33], v[{32+2*w}:{33+2*w}]")
    a(f"""
    v_mov_b32 v34, s80
    v_mov_b32 v35, s81
    s_lshl_b32 s61, s2, 1
    v_add_u32 v2, s61, v2
    v_mul_u32_u24 v2, 112, v2
    v_add_u32 v2, v2, v3
    v_lshlrev_b32 v2, 4, v2
    v_add_u32 v2, {G_ATT}, v2
    global_store_dwordx4 v2, v[32:35], s[42:43] sc1
L_sv_att_end:
    s_mov_b64 exec, s[64:65]
L_sv_att_skip:
    s_cmp_ge_u32 s2, 28
    s_cbranch_scc1 L_sv_exit
    """)
    stamp(a, 7)
    a(f"""
    v_cmp_gt_u32 vcc, 896, v0
    s_and_saveexec_b64 s[64:65], vcc
    s_cbranch_execz L_sv_h2_end
    v_cmp_le_u32 vcc, 448, v0
    s_nop 1
    v_cndmask_b32 v2, 0, 1, vcc
    v_mul_u32_u24 v3, 448, v2
    v_sub_u32 v3, v0, v3
    v_cmp_le_u32 vcc, 224, v3
    s_nop 1
    v_cndmask_b32 v4, 0, 1, vcc
    v_mul_u32_u24 v5, 224, v4
    v_sub_u32 v5, v3, v5
    v_cmp_le_u32 vcc, 112, v5
    s_nop 1
    v_cndmask_b32 v6, 0, 1, vcc
    v_mul_u32_u24 v7, 112, v6
    v_sub_u32 v7, v5, v7
    v_lshl_add_u32 v6, v2, 4, v6
    v_lshl_add_u32 v6, v6, 1, v4
    v_mul_u32_u24 v6, 112, v6
    v_add_u32 v6, v6, v7
    v_lshlrev_b32 v6, 4, v6
    v_add_u32 v8, {G_ATT}, v6
    """)
    for j in range(1, 8):
        a(f"v_add_u32 v{8+j}, 7168, v{8+j-1}")
    poll(a, "h2", [(32+4*j, 8+j, 0) for j in range(8)], tmp=(2,3))
    for j in range(1, 8):
        a(f"v_pk_add_f32 v[32:33], v[32:33], v[{32+4*j}:{33+4*j}]")
    a(f"""
    v_lshlrev_b32 v4, 3, v0
    ds_write_b64 v4, v[32:33] offset:{L_ATTP}
L_sv_h2_end:
    s_mov_b64 exec, s[64:65]
    s_waitcnt lgkmcnt(0)
    s_barrier
    s_cmp_ge_u32 s60, 2
    s_cbranch_scc1 L_sv_ln2_skip
    s_mul_i32 s61, s60, 1792
    v_lshl_add_u32 v4, v1, 2, s61
    """)
    for i in range(7):
        a(f"ds_read_b32 v{32+i}, v4 offset:{L_ATTP+i*256}")
        a(f"ds_read_b32 v{40+i}, v4 offset:{L_ATTP+3584+i*256}")
        a(f"ds_read_b32 v{48+i}, v4 offset:{L_X1+i*256}")
        a(f"ds_read_b32 v{8+i}, v4 offset:{L_MODN+i*256}")
        a(f"ds_read_b32 v{15+i}, v4 offset:{L_MODN+3584+i*256}")
        a(f"ds_read_b32 v{22+i}, v4 offset:{L_MODN+7168+i*256}")
    a("s_waitcnt lgkmcnt(0)")
    for i in range(7):
        a(f"v_add_f32 v{32+i}, v{32+i}, v{40+i}")
        rnd_bf16(a, 32+i, 5)
        a(f"v_mul_f32 v{32+i}, v{32+i}, v{8+i}")
        rnd_bf16(a, 32+i, 5)
        a(f"v_add_f32 v{48+i}, v{48+i}, v{32+i}")
        rnd_bf16(a, 48+i, 5)
        a(f"ds_write_b32 v4, v{48+i} offset:{L_X1+i*256}")
    ln_stats(a, 48, 56)
    a(f"""
    v_lshlrev_b32 v4, 3, v1
    s_lshl_b32 s61, s60, 2
    v_add_u32 v4, s61, v4
    """)
    for i in range(7):
        ln_norm(a, 48+i, 32, 56, 34)
        a(f"v_add_f32 v{22+i}, 1.0, v{22+i}")
        rnd_bf16(a, 22+i, 34)
        a(f"v_mul_f32 v32, v32, v{22+i}")
        rnd_bf16(a, 32, 34)
        a(f"v_add_f32 v32, v32, v{15+i}")
        rnd_bf16(a, 32, 34)
        a(f"ds_write_b32 v4, v32 offset:{L_A+i*512}")
    a(f"""
L_sv_ln2_skip:
    s_waitcnt lgkmcnt(0)
    s_barrier
    v_lshrrev_b32 v6, 3, v0
    v_lshlrev_b32 v4, 3, v6
    ds_read_b64 v[24:25], v4 offset:{L_A}
    ds_read_b64 v[26:27], v4 offset:{L_A+1024}
    ds_read_b64 v[28:29], v4 offset:{L_A+2048}
    ds_read_b64 v[30:31], v4 offset:{L_A+3072}
    """)
    stamp(a, 8)
    zero(a, 32, 32)
    a("s_waitcnt lgkmcnt(0)")
    for i in range(4):
        fma_tile(a, 64+4*i, 32, 24+2*i, 2)
        fma_tile(a, 80+4*i, 48, 24+2*i, 2)
    red_lanes(a, 32, 32, 3)
    swap_reduce16(a, 32)
    swap_reduce16(a, 48)
    red_write(a, 32, 3, L_RED)
    red_write(a, 48, 3, L_RED+8192)
    a(f"""
    s_waitcnt lgkmcnt(0)
    s_barrier
    v_cmp_gt_u32 vcc, 128, v0
    s_and_saveexec_b64 s[64:65], vcc
    s_cbranch_execz L_sv_act_end
    v_lshlrev_b32 v2, 2, v0
    """)
    for w in range(16):
        a(f"ds_read_b32 v{32+w}, v2 offset:{L_RED+w*512}")
        a(f"ds_read_b32 v{64+w}, v2 offset:{L_RED+8192+w*512}")
    a("s_waitcnt lgkmcnt(0)")
    for w in range(1, 16):
        a(f"v_add_f32 v32, v32, v{32+w}")
        a(f"v_add_f32 v64, v64, v{64+w}")
    g = 32; u = 64
    rnd_bf16(a, g, 9)
    rnd_bf16(a, u, 9)
    a(f"""
    v_mul_f32 v9, v{g}, v{g}
    v_mul_f32 v9, v9, v{g}
    v_mov_b32 v10, 0x3d372713
    v_fma_f32 v9, v9, v10, v{g}
    v_mul_f32 v9, 0x40135761, v9
    v_exp_f32 v9, v9
    s_nop 0
    v_add_f32 v9, 1.0, v9
    v_rcp_f32 v9, v9
    s_nop 0
    v_fma_f32 v9, v9, -2.0, 1.0
    v_add_f32 v9, 1.0, v9
    v_mul_f32 v9, 0.5, v9
    v_mul_f32 v9, v9, v{g}
    """)
    rnd_bf16(a, 9, 10)
    a(f"v_mul_f32 v{g}, v9, v{u}")
    rnd_bf16(a, g, 10)
    a(f"""
    v_lshrrev_b32 v2, 4, v0
    v_lshlrev_b32 v2, 3, v2
    v_and_b32 v3, 7, v0
    v_add_u32 v2, v2, v3
    v_lshlrev_b32 v2, 1, v2
    v_bfe_u32 v3, v0, 3, 1
    v_add_u32 v2, v2, v3
    v_lshlrev_b32 v2, 2, v2
    ds_write_b32 v2, v32 offset:{L_ACTL}
L_sv_act_end:
    s_mov_b64 exec, s[64:65]
    s_waitcnt lgkmcnt(0)
    s_barrier
    s_lshl_b32 s61, s60, 3
    v_mov_b32 v4, s61
    ds_read_b64 v[24:25], v4 offset:{L_ACTL}
    ds_read_b64 v[26:27], v4 offset:{L_ACTL+128}
    ds_read_b64 v[28:29], v4 offset:{L_ACTL+256}
    ds_read_b64 v[30:31], v4 offset:{L_ACTL+384}
    """)
    zero(a, 32, 16)
    a("s_waitcnt lgkmcnt(0)")
    for i in range(4):
        fma_tile(a, 112+4*i, 32, 24+2*i, 2)
    a(f"""
    s_mul_i32 s61, s60, 3584
    v_lshl_add_u32 v4, v1, 5, s61
    v_add_u32 v4, {L_RED}, v4
    v_cmp_gt_u32 vcc, 56, v1
    s_and_saveexec_b64 s[64:65], vcc
    ds_write_b128 v4, v[32:35]
    ds_write_b128 v4, v[36:39] offset:16
    ds_write_b128 v4, v[40:43] offset:1792
    ds_write_b128 v4, v[44:47] offset:1808
    s_mov_b64 exec, s[64:65]
    s_waitcnt lgkmcnt(0)
    s_barrier
    v_cmp_gt_u32 vcc, 448, v0
    s_and_saveexec_b64 s[64:65], vcc
    s_cbranch_execz L_sv_dnp_end
    v_lshlrev_b32 v4, 3, v0
    v_add_u32 v4, {L_RED}, v4
    v_add_u32 v5, {8*3584}, v4
    """)
    for w in range(16):
        a(f"ds_read_b64 {vr(32+2*w,2)}, v{4 if w < 8 else 5} offset:{(w%8)*3584}")
    a("s_waitcnt lgkmcnt(0)")
    for w in range(1, 16):
        a(f"v_pk_add_f32 v[32:33], v[32:33], v[{32+2*w}:{33+2*w}]")
    a(f"""
    v_mov_b32 v34, s80
    v_mov_b32 v35, s81
    s_mul_i32 s61, s2, 448
    v_add_u32 v2, s61, v0
    v_lshlrev_b32 v2, 4, v2
    v_add_u32 v2, {G_DN}, v2
    global_store_dwordx4 v2, v[32:35], s[42:43] sc1
    """)
    stamp(a, 9)
    a(f"""
    v_lshrrev_b32 v2, 4, v0
    v_mul_u32_u24 v2, 448, v2
    v_bfe_u32 v3, v0, 3, 1
    v_mul_u32_u24 v3, 224, v3
    v_add_u32 v2, v2, v3
    v_and_b32 v3, 7, v0
    v_add_u32 v2, v2, v3
    s_lshl_b32 s61, s2, 3
    v_add_u32 v2, s61, v2
    v_lshlrev_b32 v2, 4, v2
    v_add_u32 v2, {G_DN}, v2
    """)
    poll(a, "dn", [(32, 2, 0)], tmp=(4,5))
    a(f"""
    v_lshlrev_b32 v4, 3, v0
    ds_write_b64 v4, v[32:33] offset:{L_FIN}
L_sv_dnp_end:
    s_mov_b64 exec, s[64:65]
    s_waitcnt lgkmcnt(0)
    s_barrier
    v_cmp_gt_u32 vcc, 32, v0
    s_and_saveexec_b64 s[64:65], vcc
    s_cbranch_execz L_sv_dn_end
    v_lshlrev_b32 v4, 2, v0
    """)
    for s_ in range(28):
        a(f"ds_read_b32 v{32+s_}, v4 offset:{L_FIN+s_*128}")
    a(f"""
    v_and_b32 v5, 15, v0
    s_lshl_b32 s61, s2, 4
    v_add_u32 v5, s61, v5
    v_lshrrev_b32 v6, 4, v0
    v_mul_u32_u24 v6, 448, v6
    v_add_u32 v5, v5, v6
    v_lshlrev_b32 v6, 2, v5
    v_add_u32 v7, {L_MODN+10752}, v6
    ds_read_b32 v30, v6 offset:{L_X1}
    ds_read_b32 v31, v7
    s_waitcnt lgkmcnt(0)
    """)
    for s_ in range(1, 28):
        a(f"v_add_f32 v32, v32, v{32+s_}")
    rnd_bf16(a, 32, 9)
    a("v_mul_f32 v32, v32, v31")
    rnd_bf16(a, 32, 9)
    a("""
    v_add_f32 v32, v32, v30
    v_cvt_pk_bf16_f32 v32, v32, v32
    v_lshlrev_b32 v5, 1, v5
    global_store_short v5, v32, s[38:39]
L_sv_dn_end:
    s_mov_b64 exec, s[64:65]
L_sv_exit:
    """)
    stamp_store(a, 10)
    a("s_endpgm")

def main(outpath):
    hdr = open("cdna_kernels/" + NAME + ".s.ref").read().split("\n")
    out = []
    for l in hdr:
        if l.startswith("; Override") or l.startswith("; grid=") or l.startswith("; @launch") or l.startswith(".amdgcn"):
            break
        out.append(l)
    out.append(f"; @launch grid=(256,1,1) block=(1024,1,1) lds={LDS_TOTAL}")
    out.append('.amdgcn_target "amdgcn-amd-amdhsa--gfx950"')
    out.append(".text")
    k = NAME + "_kernel"
    a = Asm()
    a("""
    s_cmp_ge_u32 s2, 256
    s_cbranch_scc1 L_exit
    s_load_dwordx16 s[16:31], s[0:1], 0
    s_load_dwordx8 s[32:39], s[0:1], 64
    s_load_dwordx4 s[40:43], s[0:1], 96
    """)
    stamp(a, 0)
    a("""
    s_cmp_ge_u32 s2, 32
    s_cbranch_scc1 L_stream
    """)
    service(a)
    stream(a)
    a("L_exit:\ns_endpgm")
    out.append(f".globl {k}\n.p2align 8\n.type {k},@function\n{k}:\n" + a.text())
    out.append('.section .rodata,"a"')
    out.append(f""".p2align 6
.amdhsa_kernel {k}
  .amdhsa_next_free_vgpr 128
  .amdhsa_next_free_sgpr 102
  .amdhsa_accum_offset 128
  .amdhsa_group_segment_fixed_size 0
  .amdhsa_kernarg_size 112
  .amdhsa_user_sgpr_count 2
  .amdhsa_user_sgpr_kernarg_segment_ptr 1
  .amdhsa_system_sgpr_workgroup_id_x 1
.end_amdhsa_kernel""")
    open(outpath, "w").write("\n".join(out) + "\n")

if __name__ == "__main__":
    main(sys.argv[1] if len(sys.argv) > 1 else "cdna_kernels/" + NAME + ".s")
```

```python
import sys, os
from asmlib import *
from gen1_lib import srd, rnd_bf16, wave_allsum, swap_reduce16, zero

NAME = "adaLN_cond__mha_block_cached__geglu_ffn__decode"
STAMPS = int(os.environ.get("STAMPS", "0"))
MAXPOLL = int(os.environ.get('MAXPOLL', '20000'))

G_MODC = 0x00000
G_Q    = 0x08000
G_MODN = 0x10000
G_PART = 0x20000
PART_STRIDE = 2112
G_ATT  = 0xA0000
G_DN   = 0xC0000
G_STAMP= 0x100000

L_A    = 0x0000
L_S    = 0x1000
L_NONCE= 0x2000
L_X1   = 0x2100
L_Y    = 0x2F00
L_ATTP = 0x3D00
L_MODN = 0x5900
L_ACTL = 0x9100
L_FIN  = 0x9300
L_RED  = 0xA100
LDS_TOTAL = 0xA100 + 57344

NT = 19
KWIN = int(os.environ.get('KWIN', '32'))
KTAIL = min(3, KWIN-1)
NVP = 5
KR = 32
VP = 108

def stamp(a, idx):
    if STAMPS:
        a(f"s_memrealtime s[{82+2*idx}:{83+2*idx}]")

def stamp_store(a, n):
    if not STAMPS: return
    a(f"""
    s_waitcnt lgkmcnt(0)
    v_cmp_eq_u32 vcc, 0, v0
    s_and_saveexec_b64 s[60:61], vcc
    s_lshl_b32 s56, s2, 7
    v_mov_b32 v4, s56
    v_add_u32 v4, {G_STAMP}, v4
    """)
    for i in range(n):
        a(f"""
        v_mov_b32 v8, s{82+2*i}
        v_mov_b32 v9, s{83+2*i}
        global_store_dwordx2 v4, v[8:9], s[42:43] offset:{8*i}
        """)
    a("s_mov_b64 exec, s[60:61]")

def poll(a, name, loads, tagl="s80", tagh="s81", tmp=(2,3), sleep=1):
    t0, t1 = tmp
    a(f"s_mov_b32 s79, {MAXPOLL}")
    a(f"L_poll_{name}:")
    for (d, va, off) in loads:
        a(f"global_load_dwordx4 {vr(d,4)}, v{va}, s[42:43] offset:{off} sc1")
    a("s_waitcnt vmcnt(0)")
    first = True
    for (d, va, off) in loads:
        if first:
            a(f"v_xor_b32 v{t0}, {tagl}, v{d+2}")
            first = False
        else:
            a(f"v_xor_b32 v{t1}, {tagl}, v{d+2}")
            a(f"v_or_b32 v{t0}, v{t0}, v{t1}")
        a(f"v_xor_b32 v{t1}, {tagh}, v{d+3}")
        a(f"v_or_b32 v{t0}, v{t0}, v{t1}")
    a(f"""
    v_cmp_ne_u32 vcc, 0, v{t0}
    s_cbranch_vccz L_pollok_{name}
    s_sleep {sleep}
    s_sub_u32 s79, s79, 1
    s_cmp_lg_u32 s79, 0
    s_cbranch_scc1 L_poll_{name}
L_pollok_{name}:
    """)

def fma_tile(a, w, acc, ap, t):
    for d in range(4):
        a(f"""
        v_lshlrev_b32 v{t}, 16, v{w+d}
        v_and_b32 v{t+1}, 0xffff0000, v{w+d}
        v_pk_fma_f32 v[{acc+2*d}:{acc+2*d+1}], v[{t}:{t+1}], v[{ap}:{ap+1}], v[{acc+2*d}:{acc+2*d+1}] op_sel:[0,0,0] op_sel_hi:[1,0,1]
        v_pk_fma_f32 v[{acc+8+2*d}:{acc+8+2*d+1}], v[{t}:{t+1}], v[{ap}:{ap+1}], v[{acc+8+2*d}:{acc+8+2*d+1}] op_sel:[0,1,0] op_sel_hi:[1,1,1]
        """)

def red_lanes(a, acc, n, nb):
    steps = []
    if nb <= 1: steps.append("quad_perm:[2,3,0,1]")
    if nb <= 2: steps.append("row_ror:4")
    if nb <= 3: steps.append("row_ror:8")
    for m in steps:
        a("s_nop 1")
        for i in range(n):
            a(f"v_add_f32_dpp v{acc+i}, v{acc+i}, v{acc+i} {m} row_mask:0xf bank_mask:0xf")

def red_write(a, acc, nb, base, va=4, vt=5):
    a(f"""
    v_lshrrev_b32 v{va}, 6, v0
    v_lshlrev_b32 v{va}, {6+nb}, v{va}
    v_and_b32 v{vt}, {(1<<nb)-1}, v0
    v_lshl_add_u32 v{va}, v{vt}, 6, v{va}
    v_bfe_u32 v{vt}, v0, 4, 2
    v_lshl_add_u32 v{va}, v{vt}, 4, v{va}
    ds_write_b128 v{va}, {vr(acc,4)} offset:{base}
    """)

def ln_stats(a, xs, T):
    a(f"v_add_f32 v{T}, v{xs}, v{xs+1}")
    for i in range(2, 7):
        a(f"v_add_f32 v{T}, v{T}, v{xs+i}")
    wave_allsum(a, T, T+1)
    a(f"v_mul_f32 v{T}, 0x3b124925, v{T}")
    a(f"v_sub_f32 v{T+2}, v{xs}, v{T}")
    a(f"v_mul_f32 v{T+3}, v{T+2}, v{T+2}")
    for i in range(1, 7):
        a(f"v_sub_f32 v{T+2}, v{xs+i}, v{T}")
        a(f"v_fmac_f32 v{T+3}, v{T+2}, v{T+2}")
    wave_allsum(a, T+3, T+1)
    a(f"v_mul_f32 v{T+3}, 0x3b124925, v{T+3}")
    rnd_bf16(a, T, T+1)
    rnd_bf16(a, T+3, T+1)
    a(f"v_add_f32 v{T+3}, 0x3727c5ac, v{T+3}")
    rnd_bf16(a, T+3, T+1)
    a(f"v_sqrt_f32 v{T+3}, v{T+3}")
    a("s_nop 0")
    rnd_bf16(a, T+3, T+1)
    a(f"v_rcp_f32 v{T+4}, v{T+3}")
    a("s_nop 0")

def ln_norm(a, x, d, T, t):
    a(f"v_sub_f32 v{t}, v{x}, v{T}")
    rnd_bf16(a, t, t+1)
    a(f"v_mul_f32 v{d}, v{t}, v{T+4}")
    a(f"v_fma_f32 v{t+1}, -v{d}, v{T+3}, v{t}")
    a(f"v_fmac_f32 v{d}, v{t+1}, v{T+4}")
    rnd_bf16(a, d, t+1)

def stream(a):
    a(f"""
L_stream:
    {"s_endpgm" if os.environ.get("NOSTREAM") else ""}
    s_sub_u32 s56, s2, 32
    s_mul_hi_u32 s57, s56, 0x24924925
    s_mul_i32 s58, s57, 7
    s_sub_u32 s58, s56, s58
    s_lshl_b32 s59, s57, 21
    s_mul_i32 s61, s58, 311296
    v_lshlrev_b32 v1, 4, v0
    v_add_u32 v1, s61, v1
    s_waitcnt lgkmcnt(0)
    s_add_u32 s44, s18, s59
    s_addc_u32 s45, s19, 0
    s_and_b32 s45, s45, 0xffff
    s_mov_b32 s46, 0x200000
    s_mov_b32 s47, 0x00020000
    s_add_u32 s48, s20, s59
    s_addc_u32 s49, s21, 0
    s_and_b32 s49, s49, 0xffff
    s_mov_b32 s50, 0x200000
    s_mov_b32 s51, 0x00020000
    s_mov_b32 s60, 0
    """)
    for t in range(NT):
        if t >= KWIN:
            a(f"s_waitcnt vmcnt({KWIN-1})")
        a(f"buffer_load_dwordx4 {vr(KR+4*t,4)}, v1, s[44:47], s60 offen nt")
        if t < NT-1:
            a("s_add_u32 s60, s60, 16384")
    a(f"""
    v_and_b32 v2, 31, v0
    v_lshlrev_b32 v2, 5, v2
    s_lshl_b32 s61, s57, 10
    v_add_u32 v2, s61, v2
    v_add_u32 v3, {G_Q}, v2
    v_mov_b32 v31, 0
    s_mov_b32 s60, 0
    s_waitcnt vmcnt({KTAIL})
    global_load_dwordx2 v[12:13], v31, s[40:41] sc1
    global_load_dwordx4 v[4:7], v3, s[42:43] sc1
    global_load_dwordx4 v[8:11], v3, s[42:43] offset:16 sc1
    """)
    for t in range(NVP):
        a(f"buffer_load_dwordx4 {vr(VP+4*t,4)}, v1, s[48:51], s60 offen nt")
        a("s_add_u32 s60, s60, 16384")
    a(f"""
    s_mov_b32 s79, {MAXPOLL}
    s_waitcnt vmcnt({NVP})
L_st_chk:
    v_xor_b32 v14, v12, v6
    v_xor_b32 v15, v13, v7
    v_xor_b32 v16, v12, v10
    v_xor_b32 v17, v13, v11
    v_or3_b32 v14, v14, v15, v16
    v_or_b32 v14, v14, v17
    v_cmp_eq_u32 s[62:63], 0, v12
    v_cmp_ne_u32 vcc, 0, v14
    s_or_b64 vcc, vcc, s[62:63]
    s_cbranch_vccz L_st_ok
    s_sub_u32 s79, s79, 1
    s_cmp_eq_u32 s79, 0
    s_cbranch_scc1 L_st_ok
    s_sleep 4
    global_load_dwordx2 v[12:13], v31, s[40:41] sc1
    global_load_dwordx4 v[4:7], v3, s[42:43] sc1
    global_load_dwordx4 v[8:11], v3, s[42:43] offset:16 sc1
    s_waitcnt vmcnt(0)
    s_branch L_st_chk
L_st_ok:
    v_readfirstlane_b32 s80, v12
    v_readfirstlane_b32 s81, v13
    """)
    stamp(a, 1)
    qf = [4, 5, 8, 9]
    S = 12
    for t in range(NT):
        k = KR + 4*t
        a(f"v_dot2_f32_bf16 v{S+t}, v{k}, v{qf[0]}, 0")
        for d in range(1, 4):
            a(f"v_dot2_f32_bf16 v{S+t}, v{k+d}, v{qf[d]}, v{S+t}")
        if t + NVP < NT:
            a(f"buffer_load_dwordx4 {vr(k,4)}, v1, s[48:51], s60 offen nt")
            a("s_add_u32 s60, s60, 16384")
    TMP = 88
    a("s_nop 1")
    for m in ["quad_perm:[1,0,3,2]", "quad_perm:[2,3,0,1]", "row_half_mirror", "row_mirror"]:
        for t in range(NT):
            a(f"v_add_f32_dpp v{S+t}, v{S+t}, v{S+t} {m} row_mask:0xf bank_mask:0xf")
        a("s_nop 1")
    for t in range(NT):
        a(f"v_mov_b32 v{TMP+t}, v{S+t}")
    a("s_nop 1")
    for t in range(NT):
        a(f"v_permlane16_swap_b32 v{S+t}, v{TMP+t}")
    for t in range(NT):
        a(f"v_add_f32 v{S+t}, v{S+t}, v{TMP+t}")
    for t in range(NT):
        rnd_bf16(a, S+t, 2)
    a("""
    s_mov_b32 s62, 0x3db8aa3b
    s_cmp_eq_u32 s58, 6
    s_cselect_b32 s63, 0xff000000, 0
    """)
    for t in range(NT):
        a(f"v_mul_f32 v{S+t}, s62, v{S+t}")
    for t in range(14, NT):
        a(f"v_add_f32 v{S+t}, s63, v{S+t}")
    a(f"v_max_f32 v2, v{S}, v{S+1}")
    for t in range(2, NT):
        a(f"v_max_f32 v2, v2, v{S+t}")
    a("""
    v_mov_b32 v3, v2
    s_nop 1
    v_permlane32_swap_b32 v2, v3
    v_max_f32 v2, v2, v3
    """)
    for t in range(NT):
        a(f"v_sub_f32 v{S+t}, v{S+t}, v2")
        a(f"v_exp_f32 v{S+t}, v{S+t}")
    a("s_nop 0")
    a(f"v_add_f32 v3, v{S}, v{S+1}")
    for t in range(2, NT):
        a(f"v_add_f32 v3, v3, v{S+t}")
    a("""
    v_mov_b32 v6, v3
    s_nop 1
    v_permlane32_swap_b32 v3, v6
    v_add_f32 v3, v3, v6
    """)
    ACC = 88
    zero(a, ACC, 8)
    for t in range(NT):
        k = VP + 4*t if t < NVP else KR + 4*(t-NVP)
        a(f"s_waitcnt vmcnt({NT-1-t})")
        for d in range(4):
            a(f"""
            v_lshlrev_b32 v96, 16, v{k+d}
            v_and_b32 v97, 0xffff0000, v{k+d}
            v_pk_fma_f32 v[{ACC+2*d}:{ACC+2*d+1}], v[96:97], v[{S+t}:{S+t+1}], v[{ACC+2*d}:{ACC+2*d+1}] op_sel:[0,{(S+t)&1},0] op_sel_hi:[1,{(S+t)&1},1]
            """.replace(f"v[{S+t}:{S+t+1}]", f"v[{(S+t)&~1}:{((S+t)&~1)+1}]"))
    stamp(a, 2)
    a("s_nop 1")
    for i in range(4):
        a(f"v_permlane32_swap_b32 v{ACC+i}, v{ACC+4+i}")
    for i in range(4):
        a(f"v_add_f32 v{ACC+i}, v{ACC+i}, v{ACC+4+i}")
    a(f"""
    v_and_b32 v4, 31, v0
    v_lshlrev_b32 v4, 5, v4
    v_bfe_u32 v5, v0, 5, 1
    v_lshl_add_u32 v4, v5, 4, v4
    v_lshrrev_b32 v5, 6, v0
    v_lshl_add_u32 v4, v5, 10, v4
    ds_write_b128 v4, {vr(ACC,4)}
    v_lshlrev_b32 v5, 3, v5
    ds_write_b64 v5, v[2:3] offset:16384
    s_waitcnt lgkmcnt(0)
    s_barrier
    v_cmp_gt_u32 vcc, 128, v0
    s_and_saveexec_b64 s[60:61], vcc
    s_cbranch_execz L_st_end
    v_mov_b32 v5, 0
    """)
    for w in range(8):
        a(f"ds_read_b128 {vr(32+4*w,4)}, v5 offset:{16384+16*w}")
    a("v_lshlrev_b32 v4, 3, v0")
    for w in range(16):
        a(f"ds_read_b64 {vr(64+2*w,2)}, v4 offset:{w*1024}")
    a("s_waitcnt lgkmcnt(0)")
    a("v_max_f32 v8, v32, v34")
    for w in range(2, 16):
        a(f"v_max_f32 v8, v8, v{32+2*w}")
    zero(a, 9, 1)
    zero(a, 12, 2)
    for w in range(16):
        a(f"""
        v_sub_f32 v11, v{32+2*w}, v8
        v_exp_f32 v11, v11
        s_nop 0
        v_fmac_f32 v9, v11, v{33+2*w}
        v_fmac_f32 v12, v11, v{64+2*w}
        v_fmac_f32 v13, v11, v{65+2*w}
        """)
    a(f"""
    s_mul_i32 s56, s56, {PART_STRIDE}
    s_add_u32 s56, s56, {G_PART}
    v_lshlrev_b32 v4, 4, v0
    v_add_u32 v4, s56, v4
    v_mov_b32 v14, s80
    v_mov_b32 v15, s81
    v_mov_b32 v10, s80
    v_mov_b32 v11, s81
    global_store_dwordx4 v4, v[12:15], s[42:43] sc1
    v_cmp_eq_u32 vcc, 0, v0
    s_and_b64 exec, exec, vcc
    global_store_dwordx4 v4, v[8:11], s[42:43] offset:2048 sc1
L_st_end:
    s_mov_b64 exec, s[60:61]
    """)
    stamp(a, 3)
    stamp_store(a, 4)
    a("s_endpgm")

def service(a):
    a("""
    v_lshrrev_b32 v1, 6, v0
    s_nop 0
    v_readfirstlane_b32 s60, v1      ; wave
    v_and_b32 v1, 63, v0
    v_mov_b32 v31, 0
    s_waitcnt lgkmcnt(0)
    """)
    srd(a, 44, 34, 1792)
    srd(a, 48, 36, 448*5376)
    srd(a, 52, 22, 448*8192)
    a("""
    s_cmp_lg_u32 s60, 15
    s_cbranch_scc1 L_sv_nononce
    s_memrealtime s[62:63]
    s_waitcnt lgkmcnt(0)
    s_or_b32 s62, s62, 1
    v_mov_b32 v8, s62
    v_mov_b32 v9, s63
    v_mov_b32 v10, 0
    v_mov_b32 v11, 0
    s_mov_b64 s[64:65], exec
    s_mov_b64 exec, 1
    global_atomic_cmpswap_x2 v[12:13], v31, v[8:11], s[40:41] sc0 sc1
    s_mov_b64 exec, s[64:65]
L_sv_nononce:
    s_cmp_ge_u32 s60, 2
    s_cbranch_scc1 L_sv_nox
    s_mul_i32 s61, s60, 896
    v_lshl_add_u32 v2, v1, 1, s61
    """)
    for i in range(7):
        a(f"global_load_ushort v{60+i}, v2, s[16:17] offset:{i*128}")
    a("""
L_sv_nox:
    v_lshlrev_b32 v2, 1, v0
    buffer_load_ushort v28, v2, s[44:47], 0 offen
    ; wmodc: cg=t&7 (v30), rg=t>>3 (v6); cgp = s%14, kh = s/14
    v_and_b32 v30, 7, v0
    v_lshrrev_b32 v6, 3, v0
    v_mul_u32_u24 v3, 5376, v6
    v_lshl_add_u32 v3, v30, 4, v3
    s_cmp_ge_u32 s2, 14
    s_cselect_b32 s56, 1, 0              ; kh
    s_mul_i32 s57, s56, 14
    s_sub_u32 s57, s2, s57               ; cgp
    s_mul_i32 s58, s56, 1204224          ; kh*224*5376
    s_lshl_b32 s59, s57, 7
    s_add_u32 s58, s58, s59
    s_cmp_ge_u32 s2, 28
    s_cselect_b32 s58, 0x7f000000, s58
    s_add_u32 s59, s58, 688128
    v_mov_b32 v4, 0x7f000000
    v_cmp_gt_u32 vcc, 96, v6
    s_nop 1
    v_cndmask_b32 v4, v4, v3, vcc
    buffer_load_dwordx4 v[16:19], v3, s[48:51], s58 offen nt
    buffer_load_dwordx4 v[20:23], v4, s[48:51], s59 offen nt
    s_lshl_b32 s61, s2, 6
    v_mov_b32 v126, s61
    global_load_dword v127, v126, s[42:43] sc1
    v_cmp_le_u32 vcc, 448, v0
    s_nop 1
    v_cndmask_b32 v2, 0, 1, vcc
    v_mul_u32_u24 v3, 448, v2
    v_sub_u32 v3, v0, v3
    v_lshl_add_u32 v2, v3, 1, v2
    v_lshlrev_b32 v2, 2, v2
    v_lshlrev_b32 v3, 2, v0
    v_cmp_le_u32 vcc, 896, v0
    s_nop 1
    v_cndmask_b32 v2, v2, v3, vcc
    v_mov_b32 v5, 0
    s_cmp_ge_u32 s60, 14
    s_cbranch_scc1 L_sv_nocwait
    s_waitcnt vmcnt(3)
    v_lshlrev_b32 v5, 16, v28
L_sv_nocwait:
    v_mul_f32 v3, 0xbfb8aa3b, v5
    v_exp_f32 v3, v3
    s_nop 0
    v_add_f32 v3, 1.0, v3
    v_rcp_f32 v3, v3
    s_nop 0
    v_mul_f32 v5, v5, v3
    """)
    rnd_bf16(a, 5, 3)
    a(f"""
    ds_write_b32 v2, v5 offset:{L_S}
    s_cmp_lt_u32 s60, 14
    s_cbranch_scc1 L_sv_nopad
    ds_write_b32 v2, v5 offset:{L_A}
L_sv_nopad:
    s_waitcnt lgkmcnt(0)
    s_barrier
    v_lshrrev_b32 v7, 4, v0
    v_lshlrev_b32 v3, 13, v7
    v_and_b32 v4, 15, v0
    v_lshl_add_u32 v3, v4, 4, v3
    s_lshl_b32 s61, s2, 8
    """)
    for i in range(7):
        a(f"buffer_load_dwordx4 {vr(96+4*i,4)}, v3, s[52:55], s61 offen nt")
        a("s_add_u32 s61, s61, 524288")
    a(f"""
    s_mul_i32 s61, s56, 1792
    v_lshl_add_u32 v4, v6, 3, s61
    ds_read_b64 v[24:25], v4 offset:{L_S}
    ds_read_b64 v[26:27], v4 offset:{L_S+1024}
    """)
    zero(a, 32, 16)
    a("s_waitcnt vmcnt(8) lgkmcnt(0)")
    stamp(a, 1)
    fma_tile(a, 16, 32, 24, 28)
    fma_tile(a, 20, 32, 26, 28)
    red_lanes(a, 32, 16, 3)
    swap_reduce16(a, 32)
    red_write(a, 32, 3, L_RED)
    a(f"""
    s_cmp_lg_u32 s60, 15
    s_cbranch_scc1 L_sv_nononce2
    v_cmp_eq_u32 vcc, 0, v12
    s_nop 1
    v_cndmask_b32 v12, v12, v8, vcc
    v_cndmask_b32 v13, v13, v9, vcc
    s_mov_b64 s[64:65], exec
    s_mov_b64 exec, 1
    ds_write_b64 v31, v[12:13] offset:{L_NONCE}
    s_mov_b64 exec, s[64:65]
L_sv_nononce2:
    s_cmp_ge_u32 s60, 2
    s_cbranch_scc1 L_sv_noy
    """)
    for i in range(7):
        a(f"v_lshlrev_b32 v{60+i}, 16, v{60+i}")
    a(f"""
    s_mul_i32 s61, s60, 1792
    v_lshl_add_u32 v4, v1, 2, s61
    """)
    for i in range(7):
        a(f"ds_write_b32 v4, v{60+i} offset:{L_X1+i*256}")
    ln_stats(a, 60, 8)
    a(f"""
    v_lshlrev_b32 v4, 3, v1
    s_lshl_b32 s61, s60, 2
    v_add_u32 v4, s61, v4
    """)
    for i in range(7):
        ln_norm(a, 60+i, 14, 8, 16)
        a(f"ds_write_b32 v4, v14 offset:{L_Y+i*512}")
    a(f"""
L_sv_noy:
    s_waitcnt lgkmcnt(0)
    """)
    if os.environ.get("WSTAMP"):
        a(f"""
        s_memrealtime s[70:71]
        s_waitcnt lgkmcnt(0)
        s_lshl_b32 s72, s2, 8
        s_lshl_b32 s73, s60, 4
        s_add_u32 s72, s72, s73
        s_add_u32 s72, s72, {G_STAMP+0x10000}
        v_mov_b32 v124, s72
        v_mov_b32 v126, s70
        v_mov_b32 v127, s71
        global_store_dwordx2 v124, v[126:127], s[42:43]
        """)
    a(f"""
    s_barrier
    ds_read_b64 v[2:3], v31 offset:{L_NONCE}
    s_waitcnt lgkmcnt(0)
    v_readfirstlane_b32 s80, v2
    v_readfirstlane_b32 s81, v3
    s_cmp_ge_u32 s2, 28
    s_cbranch_scc1 L_sv_modc_done
    v_cmp_gt_u32 vcc, 64, v0
    s_and_saveexec_b64 s[64:65], vcc
    s_cbranch_execz L_sv_modc_end
    v_lshrrev_b32 v2, 3, v0
    v_lshlrev_b32 v2, 4, v2
    v_and_b32 v3, 7, v0
    v_add_u32 v2, v2, v3
    v_lshlrev_b32 v2, 2, v2
    """)
    for w in range(16):
        a(f"ds_read_b32 v{32+w}, v2 offset:{L_RED+w*512}")
        a(f"ds_read_b32 v{48+w}, v2 offset:{L_RED+w*512+32}")
    a("s_waitcnt lgkmcnt(0)")
    for w in range(1, 16):
        a(f"v_add_f32 v32, v32, v{32+w}")
        a(f"v_add_f32 v48, v48, v{48+w}")
    a(f"""
    v_mov_b32 v33, v48
    v_mov_b32 v34, s80
    v_mov_b32 v35, s81
    s_mul_i32 s61, s56, 896
    s_lshl_b32 s62, s57, 6
    s_add_u32 s61, s61, s62
    v_add_u32 v3, s61, v0
    v_lshlrev_b32 v3, 4, v3
    global_store_dwordx4 v3, v[32:35], s[42:43] offset:{G_MODC} sc1
L_sv_modc_end:
    s_mov_b64 exec, s[64:65]
L_sv_modc_done:
    """)
    stamp(a, 2)
    a(f"""
    v_cmp_gt_u32 vcc, 448, v0
    s_and_saveexec_b64 s[64:65], vcc
    s_cbranch_execz L_sv_h_end
    v_lshlrev_b32 v4, 4, v0
    v_add_u32 v5, 7168, v4
    v_add_u32 v6, 14336, v4
    v_add_u32 v29, 21504, v4
    v_lshlrev_b32 v30, 3, v0
    ds_read_b64 v[24:25], v30 offset:{L_Y}
    """)
    poll(a, "modc", [(8, 4, G_MODC), (12, 5, G_MODC), (16, 6, G_MODC), (20, 29, G_MODC)], tmp=(2,3))
    a("s_waitcnt lgkmcnt(0)")
    for b in range(2):
        a(f"v_add_f32 v{8+b}, v{8+b}, v{16+b}")
        rnd_bf16(a, 8+b, 2)
        a(f"v_add_f32 v{12+b}, v{12+b}, v{20+b}")
        rnd_bf16(a, 12+b, 2)
        a(f"v_add_f32 v{12+b}, 1.0, v{12+b}")
        rnd_bf16(a, 12+b, 2)
        a(f"v_mul_f32 v{12+b}, v{24+b}, v{12+b}")
        rnd_bf16(a, 12+b, 2)
        a(f"v_add_f32 v{12+b}, v{12+b}, v{8+b}")
        rnd_bf16(a, 12+b, 2)
    a(f"""
    ds_write_b64 v30, v[12:13] offset:{L_A}
L_sv_h_end:
    s_mov_b64 exec, s[64:65]
    s_waitcnt lgkmcnt(0)
    s_barrier
    v_lshlrev_b32 v4, 3, v7
    """)
    stamp(a, 3)
    for i in range(7):
        a(f"ds_read_b64 {vr(8+2*i,2)}, v4 offset:{L_A+i*512}")
    zero(a, 32, 16)
    a("s_waitcnt vmcnt(0) lgkmcnt(0)")
    for i in range(7):
        fma_tile(a, 96+4*i, 32, 8+2*i, 28)
    swap_reduce16(a, 32)
    red_write(a, 32, 4, L_RED)
    a(f"""
    s_waitcnt lgkmcnt(0)
    s_barrier
    v_cmp_gt_u32 vcc, 64, v0
    s_and_saveexec_b64 s[64:65], vcc
    s_cbranch_execz L_sv_q_end
    v_bfe_u32 v2, v0, 1, 4
    v_lshlrev_b32 v2, 4, v2
    v_lshrrev_b32 v3, 5, v0
    v_lshl_add_u32 v2, v3, 3, v2
    v_and_b32 v4, 1, v0
    v_lshl_add_u32 v2, v4, 2, v2
    v_lshlrev_b32 v2, 2, v2
    """)
    for w in range(16):
        a(f"ds_read_b128 {vr(32+4*w,4)}, v2 offset:{L_RED+w*1024}")
    a("s_waitcnt lgkmcnt(0)")
    for w in range(1, 16):
        a(f"v_pk_add_f32 v[32:33], v[32:33], v[{32+4*w}:{33+4*w}]")
        a(f"v_pk_add_f32 v[34:35], v[34:35], v[{34+4*w}:{35+4*w}]")
    a(f"""
    v_cvt_pk_bf16_f32 v32, v32, v33
    v_cvt_pk_bf16_f32 v33, v34, v35
    v_mov_b32 v34, s80
    v_mov_b32 v35, s81
    v_lshlrev_b32 v3, 10, v3
    v_and_b32 v4, 31, v0
    v_add_u32 v3, v3, v4
    s_lshl_b32 s61, s2, 5
    v_add_u32 v3, s61, v3
    v_lshlrev_b32 v3, 4, v3
    v_add_u32 v3, {G_Q}, v3
    global_store_dwordx4 v3, v[32:35], s[42:43] sc1
L_sv_q_end:
    s_mov_b64 exec, s[64:65]
    """)
    stamp(a, 4)
    srd(a, 44, 24, 4096*896)
    srd(a, 52, 28, 448*3584)
    a("""
    v_and_b32 v2, 7, v0
    v_lshrrev_b32 v6, 3, v0
    v_mul_u32_u24 v3, 5376, v6
    v_lshl_add_u32 v3, v2, 4, v3
    s_lshl_b32 s61, s2, 7
    s_add_u32 s61, s61, 1792
    s_cmp_ge_u32 s2, 28
    s_cselect_b32 s61, 0x7f000000, s61
    """)
    for i in range(4):
        a(f"buffer_load_dwordx4 {vr(96+4*i,4)}, v3, s[48:51], s61 offen nt")
        if i < 3: a("s_add_u32 s61, s61, 688128")
    a("""
    v_and_b32 v4, 31, v0
    v_lshrrev_b32 v5, 5, v0
    v_mul_u32_u24 v3, 896, v5
    v_lshl_add_u32 v3, v4, 4, v3
    v_cmp_le_u32 vcc, 28, v4
    v_mov_b32 v24, 0x7f000000
    s_nop 0
    v_cndmask_b32 v3, v3, v24, vcc
    s_lshr_b32 s61, s2, 1
    s_mul_i32 s61, s61, 229376
    s_and_b32 s62, s2, 1
    s_mul_i32 s62, s62, 448
    s_add_u32 s61, s61, s62
    """)
    for i in range(8):
        a(f"buffer_load_dwordx4 {vr(32+4*i,4)}, v3, s[44:47], s61 offen nt")
        if i < 7: a("s_add_u32 s61, s61, 28672")
    srd(a, 44, 30, 448*3584)
    a("""
    v_mul_u32_u24 v3, 3584, v6
    v_lshl_add_u32 v3, v2, 4, v3
    s_lshl_b32 s61, s2, 7
    s_cmp_ge_u32 s2, 28
    s_cselect_b32 s61, 0x7f000000, s61
    """)
    for i in range(4):
        a(f"buffer_load_dwordx4 {vr(64+4*i,4)}, v3, s[52:55], s61 offen nt")
        a(f"buffer_load_dwordx4 {vr(80+4*i,4)}, v3, s[44:47], s61 offen nt")
        if i < 3: a("s_add_u32 s61, s61, 458752")
    srd(a, 52, 32, 1792*896)
    a("""
    v_lshlrev_b32 v3, 4, v1
    v_cmp_le_u32 vcc, 56, v1
    v_mov_b32 v24, 0x7f000000
    s_nop 0
    v_cndmask_b32 v3, v3, v24, vcc
    s_lshl_b32 s61, s2, 6
    s_add_u32 s61, s61, s60
    s_mul_i32 s61, s61, 896
    s_cmp_ge_u32 s2, 28
    s_cselect_b32 s61, 0x7f000000, s61
    """)
    for i in range(4):
        a(f"buffer_load_dwordx4 {vr(112+4*i,4)}, v3, s[52:55], s61 offen nt")
        if i < 3: a("s_add_u32 s61, s61, 14336")
    a(f"""
    v_lshlrev_b32 v4, 3, v6
    ds_read_b64 v[24:25], v4 offset:{L_S}
    ds_read_b64 v[26:27], v4 offset:{L_S+1024}
    ds_read_b64 v[28:29], v4 offset:{L_S+2048}
    ds_read_b64 v[30:31], v4 offset:{L_S+3072}
    """)
    zero(a, 8, 16)
    a("s_waitcnt vmcnt(20) lgkmcnt(0)")
    for i in range(4):
        fma_tile(a, 96+4*i, 8, 24+2*i, 2)
    red_lanes(a, 8, 16, 3)
    swap_reduce16(a, 8)
    red_write(a, 8, 3, L_RED+16384)
    a(f"""
    s_waitcnt lgkmcnt(0)
    s_barrier
    s_cmp_ge_u32 s2, 28
    s_cbranch_scc1 L_sv_modn_done
    v_cmp_gt_u32 vcc, 64, v0
    s_and_saveexec_b64 s[64:65], vcc
    s_cbranch_execz L_sv_modn_end
    v_lshrrev_b32 v2, 3, v0
    v_lshlrev_b32 v2, 4, v2
    v_and_b32 v3, 7, v0
    v_add_u32 v2, v2, v3
    v_lshlrev_b32 v2, 2, v2
    """)
    for w in range(16):
        a(f"ds_read_b32 v{8+w}, v2 offset:{L_RED+16384+w*512}")
        a(f"ds_read_b32 v{96+w}, v2 offset:{L_RED+16384+w*512+32}")
    a("s_waitcnt lgkmcnt(0)")
    for w in range(1, 16):
        a(f"v_add_f32 v8, v8, v{8+w}")
        a(f"v_add_f32 v96, v96, v{96+w}")
    rnd_bf16(a, 8, 4)
    rnd_bf16(a, 96, 4)
    a(f"""
    v_mov_b32 v9, v96
    v_mov_b32 v10, s80
    v_mov_b32 v11, s81
    s_lshl_b32 s61, s2, 6
    v_add_u32 v3, s61, v0
    v_lshlrev_b32 v3, 4, v3
    v_add_u32 v3, {G_MODN}, v3
    global_store_dwordx4 v3, v[8:11], s[42:43] sc1
L_sv_modn_end:
    s_mov_b64 exec, s[64:65]
L_sv_modn_done:
    v_mov_b32 v31, 0
    s_cmp_lt_u32 s60, 8
    s_cbranch_scc1 L_sv_modn_skip
    s_cmp_ge_u32 s60, 12
    s_cbranch_scc1 L_sv_modn_skip
    s_sub_u32 s61, s60, 8
    s_mul_i32 s62, s61, 7168
    v_lshlrev_b32 v4, 4, v1
    v_add_u32 v4, s62, v4
    v_add_u32 v4, {G_MODN}, v4
    v_add_u32 v5, 4096, v4
    s_mul_i32 s62, s61, 3584
    v_lshl_add_u32 v6, v1, 2, s62
    """)
    regs = [8, 12, 16, 20, 24, 96, 100]
    poll(a, "modn", [(regs[i], 4 if i < 4 else 5, (i%4)*1024) for i in range(7)], tmp=(2,3))
    for i in range(7):
        a(f"ds_write_b32 v6, v{regs[i]} offset:{L_MODN+i*256}")
        a(f"ds_write_b32 v6, v{regs[i]+1} offset:{L_MODN+1792+i*256}")
    a("L_sv_modn_skip:")
    stamp(a, 5)
    a(f"""
    s_cmp_lt_u32 s60, 4
    s_cbranch_scc1 L_sv_part_skip
    s_cmp_ge_u32 s60, 8
    s_cbranch_scc1 L_sv_part_skip
    s_lshr_b32 s61, s2, 1
    v_bfe_u32 v2, v0, 7, 1
    v_lshlrev_b32 v2, 4, v2
    v_add_u32 v2, s61, v2
    v_mul_u32_u24 v2, {7*PART_STRIDE}, v2
    v_add_u32 v2, {G_PART}, v2
    v_and_b32 v3, 127, v0
    v_lshl_add_u32 v3, v3, 4, v2
    v_add_u32 v4, {2*PART_STRIDE}, v3
    v_add_u32 v5, {4*PART_STRIDE}, v3
    v_add_u32 v6, {6*PART_STRIDE}, v3
    v_add_u32 v25, 2048, v2
    v_add_u32 v26, {2048+2*PART_STRIDE}, v2
    v_add_u32 v27, {2048+4*PART_STRIDE}, v2
    v_add_u32 v28, {2048+6*PART_STRIDE}, v2
    """)
    mlr = [8, 12, 16, 20, 96, 100, 104]
    mll = [(mlr[0], 25, 0), (mlr[1], 25, PART_STRIDE), (mlr[2], 26, 0), (mlr[3], 26, PART_STRIDE),
           (mlr[4], 27, 0), (mlr[5], 27, PART_STRIDE), (mlr[6], 28, 0)]
    poll(a, "ml", mll, tmp=(29,30), sleep=8)
    a(f"v_max_f32 v29, v{mlr[0]}, v{mlr[1]}")
    for j in range(2, 7):
        a(f"v_max_f32 v29, v29, v{mlr[j]}")
    for j in range(7):
        a(f"v_sub_f32 v{mlr[j]}, v{mlr[j]}, v29")
        a(f"v_exp_f32 v{mlr[j]}, v{mlr[j]}")
    a("s_nop 0")
    a(f"v_mul_f32 v29, v{mlr[0]}, v{mlr[0]+1}")
    for j in range(1, 7):
        a(f"v_fmac_f32 v29, v{mlr[j]}, v{mlr[j]+1}")
    wj = [10, 11, 14, 15, 18, 19, 22]
    a(f"v_mov_b32 v23, v{mlr[3]}")
    a(f"v_mov_b32 v10, v{mlr[0]}")
    a(f"v_mov_b32 v11, v{mlr[1]}")
    a(f"v_mov_b32 v14, v{mlr[2]}")
    a(f"v_mov_b32 v15, v23")
    a(f"v_mov_b32 v18, v{mlr[4]}")
    a(f"v_mov_b32 v19, v{mlr[5]}")
    a(f"v_mov_b32 v22, v{mlr[6]}")
    zero(a, 8, 2)
    poll(a, "pa", [(96, 3, 0), (100, 3, PART_STRIDE), (104, 4, 0), (108, 4, PART_STRIDE)], tmp=(30,31))
    for j in range(4):
        a(f"v_fmac_f32 v8, v{wj[j]}, v{96+4*j}")
        a(f"v_fmac_f32 v9, v{wj[j]}, v{97+4*j}")
    poll(a, "pb", [(96, 5, 0), (100, 5, PART_STRIDE), (104, 6, 0)], tmp=(30,31))
    for j in range(3):
        a(f"v_fmac_f32 v8, v{wj[4+j]}, v{96+4*j}")
        a(f"v_fmac_f32 v9, v{wj[4+j]}, v{97+4*j}")
    a("""
    v_rcp_f32 v30, v29
    s_nop 0
    v_mul_f32 v12, v8, v30
    v_fma_f32 v13, -v12, v29, v8
    v_fmac_f32 v12, v13, v30
    v_mul_f32 v16, v9, v30
    v_fma_f32 v13, -v16, v29, v9
    v_fmac_f32 v16, v13, v30
    """)
    rnd_bf16(a, 12, 13)
    rnd_bf16(a, 16, 13)
    a(f"""
    v_and_b32 v3, 127, v0
    v_lshlrev_b32 v3, 4, v3
    v_bfe_u32 v2, v0, 7, 1
    v_lshl_add_u32 v3, v2, 2, v3
    ds_write_b32 v3, v12 offset:{L_A}
    ds_write_b32 v3, v16 offset:{L_A+8}
    v_mov_b32 v31, 0
L_sv_part_skip:
    s_waitcnt lgkmcnt(0)
    s_barrier
    """)
    stamp(a, 6)
    a(f"""
    v_lshrrev_b32 v5, 5, v0
    v_lshlrev_b32 v4, 3, v5
    """)
    for i in range(7):
        a(f"ds_read_b64 {vr(2+0,2) if False else vr(96+2*i,2)}, v4 offset:{L_A+i*256}")
    a(f"ds_read_b64 v[110:111], v4 offset:{L_A+7*256}")
    zero(a, 8, 16)
    a("s_waitcnt vmcnt(0) lgkmcnt(0)")
    for i in range(8):
        fma_tile(a, 32+4*i, 8, 96+2*i if i < 7 else 110, 6)
    a("s_nop 1")
    for i in range(8):
        a(f"v_permlane32_swap_b32 v{8+i}, v{16+i}")
    for i in range(8):
        a(f"v_add_f32 v{8+i}, v{8+i}, v{16+i}")
    a(f"""
    v_lshlrev_b32 v4, 5, v0
    ds_write_b128 v4, v[8:11] offset:{L_RED}
    ds_write_b128 v4, v[12:15] offset:{L_RED+16}
    s_waitcnt lgkmcnt(0)
    s_barrier
    s_cmp_ge_u32 s60, 4
    s_cbranch_scc1 L_sv_att_skip
    v_and_b32 v3, 127, v0
    v_cmp_gt_u32 vcc, 112, v3
    s_and_saveexec_b64 s[64:65], vcc
    s_cbranch_execz L_sv_att_end
    v_bfe_u32 v2, v0, 7, 1
    v_lshlrev_b32 v4, 10, v2
    v_lshl_add_u32 v4, v3, 3, v4
    v_add_u32 v5, 16384, v4
    """)
    for w in range(16):
        a(f"ds_read_b64 {vr(32+2*w,2)}, v{4 if w < 8 else 5} offset:{L_RED+(w%8)*2048}")
    a("s_waitcnt lgkmcnt(0)")
    for w in range(1, 16):
        a(f"v_pk_add_f32 v[32:33], v[32:33], v[{32+2*w}:{33+2*w}]")
    a(f"""
    v_mov_b32 v34, s80
    v_mov_b32 v35, s81
    s_lshl_b32 s61, s2, 1
    v_add_u32 v2, s61, v2
    v_mul_u32_u24 v2, 112, v2
    v_add_u32 v2, v2, v3
    v_lshlrev_b32 v2, 4, v2
    v_add_u32 v2, {G_ATT}, v2
    global_store_dwordx4 v2, v[32:35], s[42:43] sc1
L_sv_att_end:
    s_mov_b64 exec, s[64:65]
L_sv_att_skip:
    s_cmp_ge_u32 s2, 28
    s_cbranch_scc1 L_sv_exit
    """)
    stamp(a, 7)
    a(f"""
    v_cmp_gt_u32 vcc, 896, v0
    s_and_saveexec_b64 s[64:65], vcc
    s_cbranch_execz L_sv_h2_end
    v_cmp_le_u32 vcc, 448, v0
    s_nop 1
    v_cndmask_b32 v2, 0, 1, vcc
    v_mul_u32_u24 v3, 448, v2
    v_sub_u32 v3, v0, v3
    v_cmp_le_u32 vcc, 224, v3
    s_nop 1
    v_cndmask_b32 v4, 0, 1, vcc
    v_mul_u32_u24 v5, 224, v4
    v_sub_u32 v5, v3, v5
    v_cmp_le_u32 vcc, 112, v5
    s_nop 1
    v_cndmask_b32 v6, 0, 1, vcc
    v_mul_u32_u24 v7, 112, v6
    v_sub_u32 v7, v5, v7
    v_lshl_add_u32 v6, v2, 4, v6
    v_lshl_add_u32 v6, v6, 1, v4
    v_mul_u32_u24 v6, 112, v6
    v_add_u32 v6, v6, v7
    v_lshlrev_b32 v6, 4, v6
    v_add_u32 v8, {G_ATT}, v6
    """)
    for j in range(1, 8):
        a(f"v_add_u32 v{8+j}, 7168, v{8+j-1}")
    poll(a, "h2", [(32+4*j, 8+j, 0) for j in range(8)], tmp=(2,3))
    for j in range(1, 8):
        a(f"v_pk_add_f32 v[32:33], v[32:33], v[{32+4*j}:{33+4*j}]")
    a(f"""
    v_lshlrev_b32 v4, 3, v0
    ds_write_b64 v4, v[32:33] offset:{L_ATTP}
L_sv_h2_end:
    s_mov_b64 exec, s[64:65]
    s_waitcnt lgkmcnt(0)
    s_barrier
    s_cmp_ge_u32 s60, 2
    s_cbranch_scc1 L_sv_ln2_skip
    s_mul_i32 s61, s60, 1792
    v_lshl_add_u32 v4, v1, 2, s61
    """)
    for i in range(7):
        a(f"ds_read_b32 v{32+i}, v4 offset:{L_ATTP+i*256}")
        a(f"ds_read_b32 v{40+i}, v4 offset:{L_ATTP+3584+i*256}")
        a(f"ds_read_b32 v{48+i}, v4 offset:{L_X1+i*256}")
        a(f"ds_read_b32 v{8+i}, v4 offset:{L_MODN+i*256}")
        a(f"ds_read_b32 v{15+i}, v4 offset:{L_MODN+3584+i*256}")
        a(f"ds_read_b32 v{22+i}, v4 offset:{L_MODN+7168+i*256}")
    a("s_waitcnt lgkmcnt(0)")
    for i in range(7):
        a(f"v_add_f32 v{32+i}, v{32+i}, v{40+i}")
        rnd_bf16(a, 32+i, 5)
        a(f"v_mul_f32 v{32+i}, v{32+i}, v{8+i}")
        rnd_bf16(a, 32+i, 5)
        a(f"v_add_f32 v{48+i}, v{48+i}, v{32+i}")
        rnd_bf16(a, 48+i, 5)
        a(f"ds_write_b32 v4, v{48+i} offset:{L_X1+i*256}")
    ln_stats(a, 48, 56)
    a(f"""
    v_lshlrev_b32 v4, 3, v1
    s_lshl_b32 s61, s60, 2
    v_add_u32 v4, s61, v4
    """)
    for i in range(7):
        ln_norm(a, 48+i, 32, 56, 34)
        a(f"v_add_f32 v{22+i}, 1.0, v{22+i}")
        rnd_bf16(a, 22+i, 34)
        a(f"v_mul_f32 v32, v32, v{22+i}")
        rnd_bf16(a, 32, 34)
        a(f"v_add_f32 v32, v32, v{15+i}")
        rnd_bf16(a, 32, 34)
        a(f"ds_write_b32 v4, v32 offset:{L_A+i*512}")
    a(f"""
L_sv_ln2_skip:
    s_waitcnt lgkmcnt(0)
    s_barrier
    v_lshrrev_b32 v6, 3, v0
    v_lshlrev_b32 v4, 3, v6
    ds_read_b64 v[24:25], v4 offset:{L_A}
    ds_read_b64 v[26:27], v4 offset:{L_A+1024}
    ds_read_b64 v[28:29], v4 offset:{L_A+2048}
    ds_read_b64 v[30:31], v4 offset:{L_A+3072}
    """)
    stamp(a, 8)
    zero(a, 32, 32)
    a("s_waitcnt lgkmcnt(0)")
    for i in range(4):
        fma_tile(a, 64+4*i, 32, 24+2*i, 2)
        fma_tile(a, 80+4*i, 48, 24+2*i, 2)
    red_lanes(a, 32, 32, 3)
    swap_reduce16(a, 32)
    swap_reduce16(a, 48)
    red_write(a, 32, 3, L_RED)
    red_write(a, 48, 3, L_RED+8192)
    a(f"""
    s_waitcnt lgkmcnt(0)
    s_barrier
    v_cmp_gt_u32 vcc, 128, v0
    s_and_saveexec_b64 s[64:65], vcc
    s_cbranch_execz L_sv_act_end
    v_lshlrev_b32 v2, 2, v0
    """)
    for w in range(16):
        a(f"ds_read_b32 v{32+w}, v2 offset:{L_RED+w*512}")
        a(f"ds_read_b32 v{64+w}, v2 offset:{L_RED+8192+w*512}")
    a("s_waitcnt lgkmcnt(0)")
    for w in range(1, 16):
        a(f"v_add_f32 v32, v32, v{32+w}")
        a(f"v_add_f32 v64, v64, v{64+w}")
    g = 32; u = 64
    rnd_bf16(a, g, 9)
    rnd_bf16(a, u, 9)
    a(f"""
    v_mul_f32 v9, v{g}, v{g}
    v_mul_f32 v9, v9, v{g}
    v_mov_b32 v10, 0x3d372713
    v_fma_f32 v9, v9, v10, v{g}
    v_mul_f32 v9, 0x40135761, v9
    v_exp_f32 v9, v9
    s_nop 0
    v_add_f32 v9, 1.0, v9
    v_rcp_f32 v9, v9
    s_nop 0
    v_fma_f32 v9, v9, -2.0, 1.0
    v_add_f32 v9, 1.0, v9
    v_mul_f32 v9, 0.5, v9
    v_mul_f32 v9, v9, v{g}
    """)
    rnd_bf16(a, 9, 10)
    a(f"v_mul_f32 v{g}, v9, v{u}")
    rnd_bf16(a, g, 10)
    a(f"""
    v_lshrrev_b32 v2, 4, v0
    v_lshlrev_b32 v2, 3, v2
    v_and_b32 v3, 7, v0
    v_add_u32 v2, v2, v3
    v_lshlrev_b32 v2, 1, v2
    v_bfe_u32 v3, v0, 3, 1
    v_add_u32 v2, v2, v3
    v_lshlrev_b32 v2, 2, v2
    ds_write_b32 v2, v32 offset:{L_ACTL}
L_sv_act_end:
    s_mov_b64 exec, s[64:65]
    s_waitcnt lgkmcnt(0)
    s_barrier
    s_lshl_b32 s61, s60, 3
    v_mov_b32 v4, s61
    ds_read_b64 v[24:25], v4 offset:{L_ACTL}
    ds_read_b64 v[26:27], v4 offset:{L_ACTL+128}
    ds_read_b64 v[28:29], v4 offset:{L_ACTL+256}
    ds_read_b64 v[30:31], v4 offset:{L_ACTL+384}
    """)
    zero(a, 32, 16)
    a("s_waitcnt lgkmcnt(0)")
    for i in range(4):
        fma_tile(a, 112+4*i, 32, 24+2*i, 2)
    a(f"""
    s_mul_i32 s61, s60, 3584
    v_lshl_add_u32 v4, v1, 5, s61
    v_add_u32 v4, {L_RED}, v4
    v_cmp_gt_u32 vcc, 56, v1
    s_and_saveexec_b64 s[64:65], vcc
    ds_write_b128 v4, v[32:35]
    ds_write_b128 v4, v[36:39] offset:16
    ds_write_b128 v4, v[40:43] offset:1792
    ds_write_b128 v4, v[44:47] offset:1808
    s_mov_b64 exec, s[64:65]
    s_waitcnt lgkmcnt(0)
    s_barrier
    v_cmp_gt_u32 vcc, 448, v0
    s_and_saveexec_b64 s[64:65], vcc
    s_cbranch_execz L_sv_dnp_end
    v_lshlrev_b32 v4, 3, v0
    v_add_u32 v4, {L_RED}, v4
    v_add_u32 v5, {8*3584}, v4
    """)
    for w in range(16):
        a(f"ds_read_b64 {vr(32+2*w,2)}, v{4 if w < 8 else 5} offset:{(w%8)*3584}")
    a("s_waitcnt lgkmcnt(0)")
    for w in range(1, 16):
        a(f"v_pk_add_f32 v[32:33], v[32:33], v[{32+2*w}:{33+2*w}]")
    a(f"""
    v_mov_b32 v34, s80
    v_mov_b32 v35, s81
    s_mul_i32 s61, s2, 448
    v_add_u32 v2, s61, v0
    v_lshlrev_b32 v2, 4, v2
    v_add_u32 v2, {G_DN}, v2
    global_store_dwordx4 v2, v[32:35], s[42:43] sc1
    """)
    stamp(a, 9)
    a(f"""
    v_lshrrev_b32 v2, 4, v0
    v_mul_u32_u24 v2, 448, v2
    v_bfe_u32 v3, v0, 3, 1
    v_mul_u32_u24 v3, 224, v3
    v_add_u32 v2, v2, v3
    v_and_b32 v3, 7, v0
    v_add_u32 v2, v2, v3
    s_lshl_b32 s61, s2, 3
    v_add_u32 v2, s61, v2
    v_lshlrev_b32 v2, 4, v2
    v_add_u32 v2, {G_DN}, v2
    """)
    poll(a, "dn", [(32, 2, 0)], tmp=(4,5))
    a(f"""
    v_lshlrev_b32 v4, 3, v0
    ds_write_b64 v4, v[32:33] offset:{L_FIN}
L_sv_dnp_end:
    s_mov_b64 exec, s[64:65]
    s_waitcnt lgkmcnt(0)
    s_barrier
    v_cmp_gt_u32 vcc, 32, v0
    s_and_saveexec_b64 s[64:65], vcc
    s_cbranch_execz L_sv_dn_end
    v_lshlrev_b32 v4, 2, v0
    """)
    for s_ in range(28):
        a(f"ds_read_b32 v{32+s_}, v4 offset:{L_FIN+s_*128}")
    a(f"""
    v_and_b32 v5, 15, v0
    s_lshl_b32 s61, s2, 4
    v_add_u32 v5, s61, v5
    v_lshrrev_b32 v6, 4, v0
    v_mul_u32_u24 v6, 448, v6
    v_add_u32 v5, v5, v6
    v_lshlrev_b32 v6, 2, v5
    v_add_u32 v7, {L_MODN+10752}, v6
    ds_read_b32 v30, v6 offset:{L_X1}
    ds_read_b32 v31, v7
    s_waitcnt lgkmcnt(0)
    """)
    for s_ in range(1, 28):
        a(f"v_add_f32 v32, v32, v{32+s_}")
    rnd_bf16(a, 32, 9)
    a("v_mul_f32 v32, v32, v31")
    rnd_bf16(a, 32, 9)
    a("""
    v_add_f32 v32, v32, v30
    v_cvt_pk_bf16_f32 v32, v32, v32
    v_lshlrev_b32 v5, 1, v5
    global_store_short v5, v32, s[38:39]
L_sv_dn_end:
    s_mov_b64 exec, s[64:65]
L_sv_exit:
    """)
    stamp_store(a, 10)
    a("s_endpgm")

def main(outpath):
    hdr = open("cdna_kernels/" + NAME + ".s.ref").read().split("\n")
    out = []
    for l in hdr:
        if l.startswith("; Override") or l.startswith("; grid=") or l.startswith("; @launch") or l.startswith(".amdgcn"):
            break
        out.append(l)
    out.append(f"; @launch grid=(256,1,1) block=(1024,1,1) lds={LDS_TOTAL}")
    out.append('.amdgcn_target "amdgcn-amd-amdhsa--gfx950"')
    out.append(".text")
    k = NAME + "_kernel"
    a = Asm()
    a("""
    s_cmp_ge_u32 s2, 256
    s_cbranch_scc1 L_exit
    s_load_dwordx16 s[16:31], s[0:1], 0
    s_load_dwordx8 s[32:39], s[0:1], 64
    s_load_dwordx4 s[40:43], s[0:1], 96
    """)
    stamp(a, 0)
    a("""
    s_cmp_ge_u32 s2, 32
    s_cbranch_scc1 L_stream
    """)
    service(a)
    stream(a)
    a("L_exit:\ns_endpgm")
    out.append(f".globl {k}\n.p2align 8\n.type {k},@function\n{k}:\n" + a.text())
    out.append('.section .rodata,"a"')
    out.append(f""".p2align 6
.amdhsa_kernel {k}
  .amdhsa_next_free_vgpr 128
  .amdhsa_next_free_sgpr 102
  .amdhsa_accum_offset 128
  .amdhsa_group_segment_fixed_size 0
  .amdhsa_kernarg_size 112
  .amdhsa_user_sgpr_count 2
  .amdhsa_user_sgpr_kernarg_segment_ptr 1
  .amdhsa_system_sgpr_workgroup_id_x 1
.end_amdhsa_kernel""")
    open(outpath, "w").write("\n".join(out) + "\n")

if __name__ == "__main__":
    main(sys.argv[1] if len(sys.argv) > 1 else "cdna_kernels/" + NAME + ".s")
```

```python
import sys, os
from asmlib import *
from gen1_lib import srd, rnd_bf16, wave_allsum, swap_reduce16, zero

NAME = "adaLN_cond__mha_block_cached__geglu_ffn__decode"
STAMPS = int(os.environ.get("STAMPS", "0"))
MAXPOLL = int(os.environ.get('MAXPOLL', '20000'))

G_MODC = 0x00000
G_Q    = 0x08000
G_MODN = 0x10000
G_PART = 0x20000
PART_STRIDE = 2112
G_ATT  = 0xA0000
G_DN   = 0xC0000
G_STAMP= 0x100000

L_A    = 0x0000
L_S    = 0x1000
L_NONCE= 0x2000
L_X1   = 0x2100
L_Y    = 0x2F00
L_ATTP = 0x3D00
L_MODN = 0x5900
L_FIN  = 0x9100
L_OB   = 0x9F00
L_HB   = 0xA300
L_CB   = 0xAA00
L_GU   = 0xAB00
L_RED2 = 0x9100
L_RED  = 0x3D00
L_STG  = 0xB300
LDS_TOTAL = 0xB300 + 114688

NT = 19
KWIN = int(os.environ.get('KWIN', '32'))
KTAIL = min(3, KWIN-1)
NVP = 5
NVL = int(os.environ.get('NVL', '0'))
L_VB = 0x4800
KR = 32
VP = 108

SUF = int(os.environ.get("SUF", "0"))
def stamp(a, idx):
    if STAMPS and SUF and a.svc:
        m = {0:0, 6:1, 7:2, 8:4, 9:7} if not os.environ.get('SUF2') else {0:0, 6:1, 7:2, 8:4}
        if idx in m:
            a(f"s_memrealtime s[{82+2*m[idx]}:{83+2*m[idx]}]")
        return
    if STAMPS:
        a(f"s_memrealtime s[{82+2*idx}:{83+2*idx}]")
def sstamp(a, idx):
    if STAMPS and SUF:
        a(f"s_memrealtime s[{82+2*idx}:{83+2*idx}]")

def stamp_store(a, n):
    if not STAMPS: return
    a(f"""
    s_waitcnt lgkmcnt(0)
    v_cmp_eq_u32 vcc, 0, v0
    s_and_saveexec_b64 s[60:61], vcc
    s_lshl_b32 s56, s2, 7
    v_mov_b32 v4, s56
    v_add_u32 v4, {G_STAMP}, v4
    """)
    for i in range(n):
        a(f"""
        v_mov_b32 v8, s{82+2*i}
        v_mov_b32 v9, s{83+2*i}
        global_store_dwordx2 v4, v[8:9], s[42:43] offset:{8*i}
        """)
    a("s_mov_b64 exec, s[60:61]")

def poll(a, name, loads, tagl="s80", tagh="s81", tmp=(2,3), sleep=1):
    t0, t1 = tmp
    a(f"s_mov_b32 s79, {MAXPOLL}")
    a(f"L_poll_{name}:")
    for (d, va, off) in loads:
        a(f"global_load_dwordx4 {vr(d,4)}, v{va}, s[42:43] offset:{off} sc1")
    a("s_waitcnt vmcnt(0)")
    first = True
    for (d, va, off) in loads:
        if first:
            a(f"v_xor_b32 v{t0}, {tagl}, v{d+2}")
            first = False
        else:
            a(f"v_xor_b32 v{t1}, {tagl}, v{d+2}")
            a(f"v_or_b32 v{t0}, v{t0}, v{t1}")
        a(f"v_xor_b32 v{t1}, {tagh}, v{d+3}")
        a(f"v_or_b32 v{t0}, v{t0}, v{t1}")
    a(f"""
    v_cmp_ne_u32 vcc, 0, v{t0}
    s_cbranch_vccz L_pollok_{name}
    s_sleep {sleep}
    s_sub_u32 s79, s79, 1
    s_cmp_lg_u32 s79, 0
    s_cbranch_scc1 L_poll_{name}
L_pollok_{name}:
    """)

def poll_masked(a, name, loads, tagl="s80", tagh="s81", tmp=(2,3)):
    t0, t1 = tmp
    ms = [44, 46, 48, 50, 52, 54, 68, 70]
    assert len(loads) <= 8
    a(f"s_mov_b32 s79, {MAXPOLL}")
    a("s_mov_b64 s[74:75], exec")
    for (d, va, off) in loads:
        a(f"global_load_dwordx4 {vr(d,4)}, v{va}, s[42:43] offset:{off} sc1")
    a(f"L_pm_{name}:")
    a("s_waitcnt vmcnt(0)")
    for j, (d, va, off) in enumerate(loads):
        a(f"v_xor_b32 v{t0}, {tagl}, v{d+2}")
        a(f"v_xor_b32 v{t1}, {tagh}, v{d+3}")
        a(f"v_or_b32 v{t0}, v{t0}, v{t1}")
        a(f"v_cmp_ne_u32 s[{ms[j]}:{ms[j]+1}], 0, v{t0}")
    a(f"s_mov_b64 s[72:73], s[{ms[0]}:{ms[0]+1}]")
    for j in range(1, len(loads)):
        a(f"s_or_b64 s[72:73], s[72:73], s[{ms[j]}:{ms[j]+1}]")
    a(f"""
    s_cmp_eq_u64 s[72:73], 0
    s_cbranch_scc1 L_pmok_{name}
    s_sub_u32 s79, s79, 1
    s_cmp_eq_u32 s79, 0
    s_cbranch_scc1 L_pmok_{name}
    """)
    for j, (d, va, off) in enumerate(loads):
        a(f"""
        s_mov_b64 exec, s[{ms[j]}:{ms[j]+1}]
        s_cbranch_execz L_pmsk_{name}_{j}
        global_load_dwordx4 {vr(d,4)}, v{va}, s[42:43] offset:{off} sc1
L_pmsk_{name}_{j}:
        """)
    a(f"""
    s_mov_b64 exec, s[74:75]
    s_branch L_pm_{name}
L_pmok_{name}:
    s_mov_b64 exec, s[74:75]
    """)

def fma_tile(a, w, acc, ap, t):
    for d in range(4):
        a(f"""
        v_lshlrev_b32 v{t}, 16, v{w+d}
        v_and_b32 v{t+1}, 0xffff0000, v{w+d}
        v_pk_fma_f32 v[{acc+2*d}:{acc+2*d+1}], v[{t}:{t+1}], v[{ap}:{ap+1}], v[{acc+2*d}:{acc+2*d+1}] op_sel:[0,0,0] op_sel_hi:[1,0,1]
        v_pk_fma_f32 v[{acc+8+2*d}:{acc+8+2*d+1}], v[{t}:{t+1}], v[{ap}:{ap+1}], v[{acc+8+2*d}:{acc+8+2*d+1}] op_sel:[0,1,0] op_sel_hi:[1,1,1]
        """)

def red_lanes(a, acc, n, nb):
    steps = []
    if nb <= 1: steps.append("quad_perm:[2,3,0,1]")
    if nb <= 2: steps.append("row_ror:4")
    if nb <= 3: steps.append("row_ror:8")
    for m in steps:
        a("s_nop 1")
        for i in range(n):
            a(f"v_add_f32_dpp v{acc+i}, v{acc+i}, v{acc+i} {m} row_mask:0xf bank_mask:0xf")

def red_write(a, acc, nb, base, va=4, vt=5):
    a(f"""
    v_lshrrev_b32 v{va}, 6, v0
    v_lshlrev_b32 v{va}, {6+nb}, v{va}
    v_and_b32 v{vt}, {(1<<nb)-1}, v0
    v_lshl_add_u32 v{va}, v{vt}, 6, v{va}
    v_bfe_u32 v{vt}, v0, 4, 2
    v_lshl_add_u32 v{va}, v{vt}, 4, v{va}
    ds_write_b128 v{va}, {vr(acc,4)} offset:{base}
    """)

def ln_stats(a, xs, T):
    a(f"v_add_f32 v{T}, v{xs}, v{xs+1}")
    for i in range(2, 7):
        a(f"v_add_f32 v{T}, v{T}, v{xs+i}")
    wave_allsum(a, T, T+1)
    a(f"v_mul_f32 v{T}, 0x3b124925, v{T}")
    a(f"v_sub_f32 v{T+2}, v{xs}, v{T}")
    a(f"v_mul_f32 v{T+3}, v{T+2}, v{T+2}")
    for i in range(1, 7):
        a(f"v_sub_f32 v{T+2}, v{xs+i}, v{T}")
        a(f"v_fmac_f32 v{T+3}, v{T+2}, v{T+2}")
    wave_allsum(a, T+3, T+1)
    a(f"v_mul_f32 v{T+3}, 0x3b124925, v{T+3}")
    rnd_bf16(a, T, T+1)
    rnd_bf16(a, T+3, T+1)
    a(f"v_add_f32 v{T+3}, 0x3727c5ac, v{T+3}")
    rnd_bf16(a, T+3, T+1)
    a(f"v_sqrt_f32 v{T+3}, v{T+3}")
    a("s_nop 0")
    rnd_bf16(a, T+3, T+1)
    a(f"v_rcp_f32 v{T+4}, v{T+3}")
    a("s_nop 0")

def ln_norm(a, x, d, T, t):
    a(f"v_sub_f32 v{t}, v{x}, v{T}")
    rnd_bf16(a, t, t+1)
    a(f"v_mul_f32 v{d}, v{t}, v{T+4}")
    a(f"v_fma_f32 v{t+1}, -v{d}, v{T+3}, v{t}")
    a(f"v_fmac_f32 v{d}, v{t+1}, v{T+4}")
    rnd_bf16(a, d, t+1)

def stream(a):
    a(f"""
L_stream:
    {"s_endpgm" if os.environ.get("NOSTREAM") else ""}
    s_sub_u32 s56, s2, 32
    s_mul_hi_u32 s57, s56, 0x24924925
    s_mul_i32 s58, s57, 7
    s_sub_u32 s58, s56, s58
    s_lshl_b32 s59, s57, 21
    s_mul_i32 s61, s58, 300032
    v_lshlrev_b32 v1, 4, v0
    v_add_u32 v1, s61, v1
    s_add_u32 s66, s61, 300032
    s_min_u32 s66, s66, 0x200000
    v_lshrrev_b32 v2, 6, v0
    s_nop 0
    v_readfirstlane_b32 s67, v2
    s_waitcnt lgkmcnt(0)
    s_add_u32 s44, s18, s59
    s_addc_u32 s45, s19, 0
    s_and_b32 s45, s45, 0xffff
    s_mov_b32 s46, s66
    s_mov_b32 s47, 0x00020000
    s_add_u32 s48, s20, s59
    s_addc_u32 s49, s21, 0
    s_and_b32 s49, s49, 0xffff
    s_mov_b32 s50, s66
    s_mov_b32 s51, 0x00020000
    s_mov_b32 s60, 0
    """)
    for t in range(NT):
        if t >= KWIN:
            a(f"s_waitcnt vmcnt({KWIN-1})")
        a(f"buffer_load_dwordx4 {vr(KR+4*t,4)}, v1, s[44:47], s60 offen nt")
        if t < NT-1:
            a("s_add_u32 s60, s60, 16384")
    a(f"""
    v_and_b32 v2, 31, v0
    v_lshlrev_b32 v2, 5, v2
    s_lshl_b32 s61, s57, 10
    v_add_u32 v2, s61, v2
    v_add_u32 v3, {G_Q}, v2
    v_mov_b32 v31, 0
    s_mov_b32 s60, 0
    s_waitcnt vmcnt({KTAIL})
    global_load_dwordx2 v[12:13], v31, s[40:41] sc1
    global_load_dwordx4 v[4:7], v3, s[42:43] sc1
    global_load_dwordx4 v[8:11], v3, s[42:43] offset:16 sc1
    """)
    for t in range(NVP):
        a(f"buffer_load_dwordx4 {vr(VP+4*t,4)}, v1, s[48:51], s60 offen nt")
        a("s_add_u32 s60, s60, 16384")
    a(f"""
    v_lshrrev_b32 v2, 6, v0
    s_nop 0
    v_readfirstlane_b32 s64, v2
    s_mul_i32 s64, s64, {NVL*1024}
    s_add_u32 s64, s64, {L_VB}
    """)
    for t in range(NVL):
        a(f"""
        s_add_u32 s65, s64, {t*1024}
        s_mov_b32 m0, s65
        s_nop 0
        buffer_load_dwordx4 v1, s[48:51], s60 offen nt lds
        s_add_u32 s60, s60, 16384
        """)
    a(f"""
    s_mov_b32 s79, {MAXPOLL}
    s_waitcnt vmcnt({NVP+NVL})
L_st_chk:
    v_xor_b32 v14, v12, v6
    v_xor_b32 v15, v13, v7
    v_xor_b32 v16, v12, v10
    v_xor_b32 v17, v13, v11
    v_or3_b32 v14, v14, v15, v16
    v_or_b32 v14, v14, v17
    v_cmp_eq_u32 s[62:63], 0, v12
    v_cmp_ne_u32 vcc, 0, v14
    s_or_b64 vcc, vcc, s[62:63]
    s_cbranch_vccz L_st_ok
    s_sub_u32 s79, s79, 1
    s_cmp_eq_u32 s79, 0
    s_cbranch_scc1 L_st_ok
    s_sleep 4
    global_load_dwordx2 v[12:13], v31, s[40:41] sc1
    global_load_dwordx4 v[4:7], v3, s[42:43] sc1
    global_load_dwordx4 v[8:11], v3, s[42:43] offset:16 sc1
    s_waitcnt vmcnt(0)
    s_branch L_st_chk
L_st_ok:
    v_readfirstlane_b32 s80, v12
    v_readfirstlane_b32 s81, v13
    """)
    stamp(a, 1)
    qf = [4, 5, 8, 9]
    S = 12
    for t in range(NT):
        k = KR + 4*t
        a(f"v_dot2_f32_bf16 v{S+t}, v{k}, v{qf[0]}, 0")
        for d in range(1, 4):
            a(f"v_dot2_f32_bf16 v{S+t}, v{k+d}, v{qf[d]}, v{S+t}")
        if t + NVP + NVL < NT:
            a(f"buffer_load_dwordx4 {vr(k,4)}, v1, s[48:51], s60 offen nt")
            a("s_add_u32 s60, s60, 16384")
    TMP = 88
    a("s_nop 1")
    for m in ["quad_perm:[1,0,3,2]", "quad_perm:[2,3,0,1]", "row_half_mirror", "row_mirror"]:
        for t in range(NT):
            a(f"v_add_f32_dpp v{S+t}, v{S+t}, v{S+t} {m} row_mask:0xf bank_mask:0xf")
        a("s_nop 1")
    for t in range(NT):
        a(f"v_mov_b32 v{TMP+t}, v{S+t}")
    a("s_nop 1")
    for t in range(NT):
        a(f"v_permlane16_swap_b32 v{S+t}, v{TMP+t}")
    for t in range(NT):
        a(f"v_add_f32 v{S+t}, v{S+t}, v{TMP+t}")
    for t in range(NT):
        rnd_bf16(a, S+t, 2)
    a("""
    s_mov_b32 s62, 0x3db8aa3b
    s_mul_i32 s63, s58, 300032
    s_add_u32 s63, s63, 294912
    s_lshl_b32 s67, s67, 10
    s_add_u32 s63, s63, s67
    s_cmp_ge_u32 s63, s66
    s_cselect_b32 s63, 0xff000000, 0
    """)
    for t in range(NT):
        a(f"v_mul_f32 v{S+t}, s62, v{S+t}")
    for t in range(18, NT):
        a(f"v_add_f32 v{S+t}, s63, v{S+t}")
    a(f"v_max_f32 v2, v{S}, v{S+1}")
    for t in range(2, NT):
        a(f"v_max_f32 v2, v2, v{S+t}")
    a("""
    v_mov_b32 v3, v2
    s_nop 1
    v_permlane32_swap_b32 v2, v3
    v_max_f32 v2, v2, v3
    """)
    for t in range(NT):
        a(f"v_sub_f32 v{S+t}, v{S+t}, v2")
        a(f"v_exp_f32 v{S+t}, v{S+t}")
    a("s_nop 0")
    a(f"v_add_f32 v3, v{S}, v{S+1}")
    for t in range(2, NT):
        a(f"v_add_f32 v3, v3, v{S+t}")
    a("""
    v_mov_b32 v6, v3
    s_nop 1
    v_permlane32_swap_b32 v3, v6
    v_add_f32 v3, v3, v6
    """)
    ACC = 88
    zero(a, ACC, 8)
    a(f"""
    v_and_b32 v7, 63, v0
    v_lshlrev_b32 v7, 4, v7
    v_add_u32 v7, s64, v7
    """)
    for t in range(NT):
        if t < NVP:
            k = VP + 4*t
        elif t < NVP + NVL:
            k = 100 + 4*((t-NVP) & 1)
        else:
            k = KR + 4*(t-NVP-NVL)
        a(f"s_waitcnt vmcnt({NT-1-t})")
        if NVP <= t < NVP + NVL:
            a(f"ds_read_b128 {vr(k,4)}, v7 offset:{(t-NVP)*1024}")
            a("s_waitcnt lgkmcnt(0)")
        for d in range(4):
            a(f"""
            v_lshlrev_b32 v96, 16, v{k+d}
            v_and_b32 v97, 0xffff0000, v{k+d}
            v_pk_fma_f32 v[{ACC+2*d}:{ACC+2*d+1}], v[96:97], v[{S+t}:{S+t+1}], v[{ACC+2*d}:{ACC+2*d+1}] op_sel:[0,{(S+t)&1},0] op_sel_hi:[1,{(S+t)&1},1]
            """.replace(f"v[{S+t}:{S+t+1}]", f"v[{(S+t)&~1}:{((S+t)&~1)+1}]"))
    stamp(a, 2)
    a("s_nop 1")
    for i in range(4):
        a(f"v_permlane32_swap_b32 v{ACC+i}, v{ACC+4+i}")
    for i in range(4):
        a(f"v_add_f32 v{ACC+i}, v{ACC+i}, v{ACC+4+i}")
    a(f"""
    v_and_b32 v4, 31, v0
    v_lshlrev_b32 v4, 5, v4
    v_bfe_u32 v5, v0, 5, 1
    v_lshl_add_u32 v4, v5, 4, v4
    v_lshrrev_b32 v5, 6, v0
    v_lshl_add_u32 v4, v5, 10, v4
    ds_write_b128 v4, {vr(ACC,4)}
    v_lshlrev_b32 v5, 3, v5
    ds_write_b64 v5, v[2:3] offset:16384
    s_waitcnt lgkmcnt(0)
    s_barrier
    v_cmp_gt_u32 vcc, 128, v0
    s_and_saveexec_b64 s[60:61], vcc
    s_cbranch_execz L_st_end
    v_mov_b32 v5, 0
    """)
    for w in range(8):
        a(f"ds_read_b128 {vr(32+4*w,4)}, v5 offset:{16384+16*w}")
    a("v_lshlrev_b32 v4, 3, v0")
    for w in range(16):
        a(f"ds_read_b64 {vr(64+2*w,2)}, v4 offset:{w*1024}")
    a("s_waitcnt lgkmcnt(0)")
    a("v_max_f32 v8, v32, v34")
    for w in range(2, 16):
        a(f"v_max_f32 v8, v8, v{32+2*w}")
    zero(a, 9, 1)
    zero(a, 12, 2)
    for w in range(16):
        a(f"""
        v_sub_f32 v11, v{32+2*w}, v8
        v_exp_f32 v11, v11
        s_nop 0
        v_fmac_f32 v9, v11, v{33+2*w}
        v_fmac_f32 v12, v11, v{64+2*w}
        v_fmac_f32 v13, v11, v{65+2*w}
        """)
    a(f"""
    s_mul_i32 s56, s56, {PART_STRIDE}
    s_add_u32 s56, s56, {G_PART}
    v_lshlrev_b32 v4, 4, v0
    v_add_u32 v4, s56, v4
    v_mov_b32 v14, s80
    v_mov_b32 v15, s81
    v_mov_b32 v10, s80
    v_mov_b32 v11, s81
    global_store_dwordx4 v4, v[12:15], s[42:43] sc1
    v_cmp_eq_u32 vcc, 0, v0
    s_and_b64 exec, exec, vcc
    global_store_dwordx4 v4, v[8:11], s[42:43] offset:2048 sc1
L_st_end:
    s_mov_b64 exec, s[60:61]
    """)
    stamp(a, 3)
    stamp_store(a, 4)
    a("s_endpgm")

def service(a):
    a("""
    v_lshrrev_b32 v1, 6, v0
    s_nop 0
    v_readfirstlane_b32 s60, v1      ; wave
    v_and_b32 v1, 63, v0
    v_mov_b32 v31, 0
    s_waitcnt lgkmcnt(0)
    """)
    srd(a, 44, 34, 1792)
    srd(a, 48, 36, 448*5376)
    srd(a, 52, 22, 448*8192)
    a("""
    s_cmp_lg_u32 s60, 15
    s_cbranch_scc1 L_sv_nononce
    s_memrealtime s[62:63]
    s_waitcnt lgkmcnt(0)
    s_or_b32 s62, s62, 1
    v_mov_b32 v8, s62
    v_mov_b32 v9, s63
    v_mov_b32 v10, 0
    v_mov_b32 v11, 0
    s_mov_b64 s[64:65], exec
    s_mov_b64 exec, 1
    global_atomic_cmpswap_x2 v[12:13], v31, v[8:11], s[40:41] sc0 sc1
    s_mov_b64 exec, s[64:65]
L_sv_nononce:
    s_cmp_ge_u32 s60, 2
    s_cbranch_scc1 L_sv_nox
    s_mul_i32 s61, s60, 896
    v_lshl_add_u32 v2, v1, 1, s61
    """)
    for i in range(7):
        a(f"global_load_ushort v{60+i}, v2, s[16:17] offset:{i*128}")
    a("""
L_sv_nox:
    v_lshlrev_b32 v2, 1, v0
    buffer_load_ushort v28, v2, s[44:47], 0 offen
    ; wmodc: cg=t&7 (v30), rg=t>>3 (v6); cgp = s%14, kh = s/14
    v_and_b32 v30, 7, v0
    v_lshrrev_b32 v6, 3, v0
    v_mul_u32_u24 v3, 5376, v6
    v_lshl_add_u32 v3, v30, 4, v3
    s_cmp_ge_u32 s2, 14
    s_cselect_b32 s56, 1, 0              ; kh
    s_mul_i32 s57, s56, 14
    s_sub_u32 s57, s2, s57               ; cgp
    s_mul_i32 s58, s56, 1204224          ; kh*224*5376
    s_lshl_b32 s59, s57, 7
    s_add_u32 s58, s58, s59
    s_cmp_ge_u32 s2, 28
    s_cselect_b32 s58, 0x7f000000, s58
    s_add_u32 s59, s58, 688128
    v_mov_b32 v4, 0x7f000000
    v_cmp_gt_u32 vcc, 96, v6
    s_nop 1
    v_cndmask_b32 v4, v4, v3, vcc
    buffer_load_dwordx4 v[16:19], v3, s[48:51], s58 offen nt
    buffer_load_dwordx4 v[20:23], v4, s[48:51], s59 offen nt
    s_lshl_b32 s61, s2, 6
    v_mov_b32 v126, s61
    global_load_dword v127, v126, s[42:43] sc1
    v_cmp_le_u32 vcc, 448, v0
    s_nop 1
    v_cndmask_b32 v2, 0, 1, vcc
    v_mul_u32_u24 v3, 448, v2
    v_sub_u32 v3, v0, v3
    v_lshl_add_u32 v2, v3, 1, v2
    v_lshlrev_b32 v2, 2, v2
    v_lshlrev_b32 v3, 2, v0
    v_cmp_le_u32 vcc, 896, v0
    s_nop 1
    v_cndmask_b32 v2, v2, v3, vcc
    v_mov_b32 v5, 0
    s_cmp_ge_u32 s60, 14
    s_cbranch_scc1 L_sv_nocwait
    s_waitcnt vmcnt(3)
    v_lshlrev_b32 v5, 16, v28
L_sv_nocwait:
    v_mul_f32 v3, 0xbfb8aa3b, v5
    v_exp_f32 v3, v3
    s_nop 0
    v_add_f32 v3, 1.0, v3
    v_rcp_f32 v3, v3
    s_nop 0
    v_mul_f32 v5, v5, v3
    """)
    rnd_bf16(a, 5, 3)
    a(f"""
    ds_write_b32 v2, v5 offset:{L_S}
    s_cmp_lt_u32 s60, 14
    s_cbranch_scc1 L_sv_nopad
    ds_write_b32 v2, v5 offset:{L_A}
L_sv_nopad:
    s_waitcnt lgkmcnt(0)
    s_barrier
    v_lshrrev_b32 v7, 4, v0
    v_lshlrev_b32 v3, 13, v7
    v_and_b32 v4, 15, v0
    v_lshl_add_u32 v3, v4, 4, v3
    s_lshl_b32 s61, s2, 8
    """)
    for i in range(7):
        a(f"buffer_load_dwordx4 {vr(96+4*i,4)}, v3, s[52:55], s61 offen nt")
        a("s_add_u32 s61, s61, 524288")
    a(f"""
    s_mul_i32 s61, s56, 1792
    v_lshl_add_u32 v4, v6, 3, s61
    ds_read_b64 v[24:25], v4 offset:{L_S}
    ds_read_b64 v[26:27], v4 offset:{L_S+1024}
    """)
    zero(a, 32, 16)
    a("s_waitcnt vmcnt(8) lgkmcnt(0)")
    stamp(a, 1)
    fma_tile(a, 16, 32, 24, 28)
    fma_tile(a, 20, 32, 26, 28)
    red_lanes(a, 32, 16, 3)
    swap_reduce16(a, 32)
    red_write(a, 32, 3, L_RED)
    a(f"""
    s_cmp_lg_u32 s60, 15
    s_cbranch_scc1 L_sv_nononce2
    v_cmp_eq_u32 vcc, 0, v12
    s_nop 1
    v_cndmask_b32 v12, v12, v8, vcc
    v_cndmask_b32 v13, v13, v9, vcc
    s_mov_b64 s[64:65], exec
    s_mov_b64 exec, 1
    ds_write_b64 v31, v[12:13] offset:{L_NONCE}
    s_mov_b64 exec, s[64:65]
L_sv_nononce2:
    s_cmp_ge_u32 s60, 2
    s_cbranch_scc1 L_sv_noy
    """)
    for i in range(7):
        a(f"v_lshlrev_b32 v{60+i}, 16, v{60+i}")
    a(f"""
    s_mul_i32 s61, s60, 1792
    v_lshl_add_u32 v4, v1, 2, s61
    """)
    for i in range(7):
        a(f"ds_write_b32 v4, v{60+i} offset:{L_X1+i*256}")
    ln_stats(a, 60, 8)
    a(f"""
    v_lshlrev_b32 v4, 3, v1
    s_lshl_b32 s61, s60, 2
    v_add_u32 v4, s61, v4
    """)
    for i in range(7):
        ln_norm(a, 60+i, 14, 8, 16)
        a(f"ds_write_b32 v4, v14 offset:{L_Y+i*512}")
    a(f"""
L_sv_noy:
    s_waitcnt lgkmcnt(0)
    """)
    if os.environ.get("WSTAMP"):
        a(f"""
        s_memrealtime s[70:71]
        s_waitcnt lgkmcnt(0)
        s_lshl_b32 s72, s2, 8
        s_lshl_b32 s73, s60, 4
        s_add_u32 s72, s72, s73
        s_add_u32 s72, s72, {G_STAMP+0x10000}
        v_mov_b32 v124, s72
        v_mov_b32 v126, s70
        v_mov_b32 v127, s71
        global_store_dwordx2 v124, v[126:127], s[42:43]
        """)
    a(f"""
    s_barrier
    ds_read_b64 v[2:3], v31 offset:{L_NONCE}
    s_waitcnt lgkmcnt(0)
    v_readfirstlane_b32 s80, v2
    v_readfirstlane_b32 s81, v3
    s_cmp_ge_u32 s2, 28
    s_cbranch_scc1 L_sv_modc_done
    v_cmp_gt_u32 vcc, 64, v0
    s_and_saveexec_b64 s[64:65], vcc
    s_cbranch_execz L_sv_modc_end
    v_lshrrev_b32 v2, 3, v0
    v_lshlrev_b32 v2, 4, v2
    v_and_b32 v3, 7, v0
    v_add_u32 v2, v2, v3
    v_lshlrev_b32 v2, 2, v2
    """)
    for w in range(16):
        a(f"ds_read_b32 v{32+w}, v2 offset:{L_RED+w*512}")
        a(f"ds_read_b32 v{48+w}, v2 offset:{L_RED+w*512+32}")
    a("s_waitcnt lgkmcnt(0)")
    for w in range(1, 16):
        a(f"v_add_f32 v32, v32, v{32+w}")
        a(f"v_add_f32 v48, v48, v{48+w}")
    a(f"""
    v_mov_b32 v33, v48
    v_mov_b32 v34, s80
    v_mov_b32 v35, s81
    s_mul_i32 s61, s56, 896
    s_lshl_b32 s62, s57, 6
    s_add_u32 s61, s61, s62
    v_add_u32 v3, s61, v0
    v_lshlrev_b32 v3, 4, v3
    global_store_dwordx4 v3, v[32:35], s[42:43] offset:{G_MODC} sc1
L_sv_modc_end:
    s_mov_b64 exec, s[64:65]
L_sv_modc_done:
    """)
    stamp(a, 2)
    srd(a, 72, 24, 4096*896)
    a(f"""
    s_cmp_lt_u32 s60, 8
    s_cbranch_scc1 L_sv_nowodma
    s_sub_u32 s61, s60, 8
    s_mul_i32 s62, s61, 896            ; first l = (w-8)*14*64
    v_add_u32 v2, s62, v1
    s_mov_b32 s63, 0x4924925
    s_mov_b32 s63, 0x924924A
    v_mul_hi_u32 v3, v2, s63           ; row
    v_mul_u32_u24 v4, 28, v3
    v_sub_u32 v4, v2, v4               ; cg
    s_lshr_b32 s62, s2, 1
    s_mul_i32 s62, s62, 229376
    s_and_b32 s63, s2, 1
    s_mul_i32 s63, s63, 448
    s_add_u32 s62, s62, s63            ; soffset
    s_mul_i32 s61, s61, {14*1024}
    s_add_u32 s61, s61, {L_STG}
    """)
    for i in range(14):
        a(f"""
        v_mul_u32_u24 v5, 896, v3
        v_lshl_add_u32 v5, v4, 4, v5
        s_mov_b32 m0, s61
        s_add_u32 s61, s61, 1024
        buffer_load_dwordx4 v5, s[72:75], s62 offen nt lds
        """)
        if i < 13:
            a("""
            v_add_u32 v3, 2, v3
            v_add_u32 v4, 8, v4
            v_cmp_le_u32 vcc, 28, v4
            v_subrev_u32 v6, 28, v4
            s_nop 0
            v_addc_co_u32 v3, vcc, 0, v3, vcc
            v_cmp_le_u32 vcc, 28, v4
            s_nop 1
            v_cndmask_b32 v4, v4, v6, vcc
            """)
    a(f"""
L_sv_nowodma:
    """)
    a(f"""
    v_cmp_gt_u32 vcc, 448, v0
    s_and_saveexec_b64 s[64:65], vcc
    s_cbranch_execz L_sv_h_end
    v_lshlrev_b32 v4, 4, v0
    v_add_u32 v5, 7168, v4
    v_add_u32 v6, 14336, v4
    v_add_u32 v29, 21504, v4
    v_lshlrev_b32 v30, 3, v0
    ds_read_b64 v[24:25], v30 offset:{L_Y}
    """)
    poll(a, "modc", [(8, 4, G_MODC), (12, 5, G_MODC), (16, 6, G_MODC), (20, 29, G_MODC)], tmp=(2,3))
    a("s_waitcnt lgkmcnt(0)")
    for b in range(2):
        a(f"v_add_f32 v{8+b}, v{8+b}, v{16+b}")
        rnd_bf16(a, 8+b, 2)
        a(f"v_add_f32 v{12+b}, v{12+b}, v{20+b}")
        rnd_bf16(a, 12+b, 2)
        a(f"v_add_f32 v{12+b}, 1.0, v{12+b}")
        rnd_bf16(a, 12+b, 2)
        a(f"v_mul_f32 v{12+b}, v{24+b}, v{12+b}")
        rnd_bf16(a, 12+b, 2)
        a(f"v_add_f32 v{12+b}, v{12+b}, v{8+b}")
        rnd_bf16(a, 12+b, 2)
    a(f"""
    ds_write_b64 v30, v[12:13] offset:{L_A}
L_sv_h_end:
    s_mov_b64 exec, s[64:65]
    s_waitcnt lgkmcnt(0)
    s_barrier
    v_lshlrev_b32 v4, 3, v7
    """)
    stamp(a, 3)
    for i in range(7):
        a(f"ds_read_b64 {vr(8+2*i,2)}, v4 offset:{L_A+i*512}")
    zero(a, 32, 16)
    a("""
    s_cmp_lt_u32 s60, 8
    s_cbranch_scc1 L_sv_q8a
    s_waitcnt vmcnt(14) lgkmcnt(0)
    s_branch L_sv_q8b
L_sv_q8a:
    s_waitcnt vmcnt(0) lgkmcnt(0)
L_sv_q8b:
    """)
    for i in range(7):
        fma_tile(a, 96+4*i, 32, 8+2*i, 28)
    swap_reduce16(a, 32)
    red_write(a, 32, 4, L_RED)
    a(f"""
    s_waitcnt lgkmcnt(0)
    s_barrier
    v_cmp_gt_u32 vcc, 64, v0
    s_and_saveexec_b64 s[64:65], vcc
    s_cbranch_execz L_sv_q_end
    v_bfe_u32 v2, v0, 1, 4
    v_lshlrev_b32 v2, 4, v2
    v_lshrrev_b32 v3, 5, v0
    v_lshl_add_u32 v2, v3, 3, v2
    v_and_b32 v4, 1, v0
    v_lshl_add_u32 v2, v4, 2, v2
    v_lshlrev_b32 v2, 2, v2
    """)
    for w in range(16):
        a(f"ds_read_b128 {vr(32+4*w,4)}, v2 offset:{L_RED+w*1024}")
    a("s_waitcnt lgkmcnt(0)")
    for w in range(1, 16):
        a(f"v_pk_add_f32 v[32:33], v[32:33], v[{32+4*w}:{33+4*w}]")
        a(f"v_pk_add_f32 v[34:35], v[34:35], v[{34+4*w}:{35+4*w}]")
    a(f"""
    v_cvt_pk_bf16_f32 v32, v32, v33
    v_cvt_pk_bf16_f32 v33, v34, v35
    v_mov_b32 v34, s80
    v_mov_b32 v35, s81
    v_lshlrev_b32 v3, 10, v3
    v_and_b32 v4, 31, v0
    v_add_u32 v3, v3, v4
    s_lshl_b32 s61, s2, 5
    v_add_u32 v3, s61, v3
    v_lshlrev_b32 v3, 4, v3
    v_add_u32 v3, {G_Q}, v3
    global_store_dwordx4 v3, v[32:35], s[42:43] sc1
L_sv_q_end:
    s_mov_b64 exec, s[64:65]
    """)
    stamp(a, 4)
    srd(a, 44, 24, 4096*896)
    srd(a, 52, 28, 448*3584)
    a("""
    v_and_b32 v2, 7, v0
    v_lshrrev_b32 v6, 3, v0
    v_mul_u32_u24 v3, 5376, v6
    v_lshl_add_u32 v3, v2, 4, v3
    s_lshl_b32 s61, s2, 7
    s_add_u32 s61, s61, 1792
    s_cmp_ge_u32 s2, 28
    s_cselect_b32 s61, 0x7f000000, s61
    """)
    for i in range(4):
        a(f"buffer_load_dwordx4 {vr(96+4*i,4)}, v3, s[48:51], s61 offen nt")
        if i < 3: a("s_add_u32 s61, s61, 688128")
    a(f"""
    v_lshlrev_b32 v4, 3, v6
    ds_read_b64 v[24:25], v4 offset:{L_S}
    ds_read_b64 v[26:27], v4 offset:{L_S+1024}
    ds_read_b64 v[28:29], v4 offset:{L_S+2048}
    ds_read_b64 v[30:31], v4 offset:{L_S+3072}
    """)
    zero(a, 8, 16)
    a("s_waitcnt vmcnt(0) lgkmcnt(0)")
    for i in range(4):
        fma_tile(a, 96+4*i, 8, 24+2*i, 2)
    red_lanes(a, 8, 16, 3)
    swap_reduce16(a, 8)
    red_write(a, 8, 3, L_RED2)
    a(f"""
    s_waitcnt lgkmcnt(0)
    s_barrier
    s_cmp_ge_u32 s2, 28
    s_cbranch_scc1 L_sv_modn_done
    v_cmp_gt_u32 vcc, 64, v0
    s_and_saveexec_b64 s[64:65], vcc
    s_cbranch_execz L_sv_modn_end
    v_lshrrev_b32 v2, 3, v0
    v_lshlrev_b32 v2, 4, v2
    v_and_b32 v3, 7, v0
    v_add_u32 v2, v2, v3
    v_lshlrev_b32 v2, 2, v2
    """)
    for w in range(16):
        a(f"ds_read_b32 v{8+w}, v2 offset:{L_RED2+w*512}")
        a(f"ds_read_b32 v{96+w}, v2 offset:{L_RED2+w*512+32}")
    a("s_waitcnt lgkmcnt(0)")
    for w in range(1, 16):
        a(f"v_add_f32 v8, v8, v{8+w}")
        a(f"v_add_f32 v96, v96, v{96+w}")
    rnd_bf16(a, 8, 4)
    rnd_bf16(a, 96, 4)
    a(f"""
    v_mov_b32 v9, v96
    v_mov_b32 v10, s80
    v_mov_b32 v11, s81
    s_lshl_b32 s61, s2, 6
    v_add_u32 v3, s61, v0
    v_lshlrev_b32 v3, 4, v3
    v_add_u32 v3, {G_MODN}, v3
    global_store_dwordx4 v3, v[8:11], s[42:43] sc1
L_sv_modn_end:
    s_mov_b64 exec, s[64:65]
L_sv_modn_done:
    """)
    srd(a, 44, 28, 448*3584)
    srd(a, 52, 30, 448*3584)
    srd(a, 68, 32, 1792*896)
    a(f"""
    v_bfe_u32 v24, v0, 4, 2
    v_lshlrev_b32 v24, 3, v24
    v_bfe_u32 v25, v0, 2, 2
    v_add_u32 v24, v24, v25
    v_and_b32 v25, 3, v0
    v_lshlrev_b32 v25, 3, v25
    s_waitcnt vmcnt(0)
    s_barrier
    s_cmp_ge_u32 s60, 14
    s_cbranch_scc1 L_sv_w1_skip
    v_mul_u32_u24 v3, 448, v24
    v_add_u32 v3, v3, v25
    s_lshl_b32 s61, s60, 5
    s_add_u32 s61, s61, {L_STG}
    v_add_u32 v3, s61, v3
    v_add_u32 v2, {4*14336}, v3
    """)
    for ks in range(8):
        b = 3 if ks < 4 else 2
        a(f"ds_read_b64_tr_b16 v[{32+4*ks}:{33+4*ks}], v{b} offset:{(ks%4)*14336}")
        a(f"ds_read_b64_tr_b16 v[{34+4*ks}:{35+4*ks}], v{b} offset:{(ks%4)*14336+1792}")
    a(f"""
L_sv_w1_skip:
    s_waitcnt lgkmcnt(0)
    s_barrier
    s_cmp_ge_u32 s2, 28
    s_cbranch_scc1 L_sv_w23_skip
    v_lshrrev_b32 v3, 3, v1
    v_mul_u32_u24 v3, 3584, v3
    v_and_b32 v4, 7, v1
    v_lshl_add_u32 v3, v4, 4, v3
    s_and_b32 s61, s60, 7
    s_mul_i32 s62, s61, {7*8*3584}
    s_lshl_b32 s63, s2, 7
    s_add_u32 s62, s62, s63            ; soffset
    s_mul_i32 s61, s60, {7*1024}
    s_add_u32 s61, s61, {L_STG}
    s_cmp_ge_u32 s60, 8
    s_cbranch_scc1 L_sv_w2_up
    """)
    for i in range(7):
        a(f"""
        s_mov_b32 m0, s61
        s_add_u32 s61, s61, 1024
        buffer_load_dwordx4 v3, s[44:47], s62 offen nt lds
        s_add_u32 s62, s62, {8*3584}
        """)
    a("""
    s_branch L_sv_w2_done
L_sv_w2_up:
    """)
    for i in range(7):
        a(f"""
        s_mov_b32 m0, s61
        s_add_u32 s61, s61, 1024
        buffer_load_dwordx4 v3, s[52:55], s62 offen nt lds
        s_add_u32 s62, s62, {8*3584}
        """)
    a(f"""
L_sv_w2_done:
    s_waitcnt vmcnt(0)
    s_barrier
    v_lshlrev_b32 v3, 7, v24
    v_add_u32 v3, v3, v25
    s_and_b32 s61, s60, 3
    s_lshl_b32 s61, s61, 5
    s_bfe_u32 s62, s60, 0x10002
    s_mul_i32 s62, s62, 57344
    s_add_u32 s61, s61, s62
    s_lshr_b32 s62, s60, 3
    s_mul_i32 s62, s62, {7*32*128}
    s_add_u32 s61, s61, s62
    s_add_u32 s61, s61, {L_STG}
    v_add_u32 v3, s61, v3
    """)
    for j in range(7):
        a(f"ds_read_b64_tr_b16 v[{64+4*j}:{65+4*j}], v3 offset:{j*4096}")
        a(f"ds_read_b64_tr_b16 v[{66+4*j}:{67+4*j}], v3 offset:{j*4096+512}")
    a(f"""
    s_waitcnt lgkmcnt(0)
    s_barrier
    s_cmp_ge_u32 s60, 14
    s_cbranch_scc1 L_sv_w3_nodma
    v_lshlrev_b32 v3, 4, v1
    s_mul_i32 s62, s2, 57344
    s_lshl_b32 s61, s60, 12
    s_add_u32 s62, s62, s61
    s_add_u32 s61, s61, {L_STG}
    """)
    for i in range(4):
        a(f"""
        s_mov_b32 m0, s61
        s_add_u32 s61, s61, 1024
        buffer_load_dwordx4 v3, s[68:71], s62 offen nt lds
        s_add_u32 s62, s62, 1024
        """)
    a(f"""
L_sv_w3_nodma:
    s_waitcnt vmcnt(0)
    s_barrier
    v_mul_u32_u24 v3, 896, v24
    v_add_u32 v3, v3, v25
    s_lshl_b32 s61, s60, 5
    s_add_u32 s61, s61, {L_STG}
    v_add_u32 v3, s61, v3
    """)
    for tl in range(2):
        for ks in range(2):
            r = 112 + 8*tl + 4*ks
            a(f"ds_read_b64_tr_b16 v[{r}:{r+1}], v3 offset:{tl*512 + ks*28672}")
            a(f"ds_read_b64_tr_b16 v[{r+2}:{r+3}], v3 offset:{tl*512 + ks*28672 + 3584}")
    a(f"""
L_sv_w23_skip:
    s_waitcnt lgkmcnt(0)
    v_mov_b32 v31, 0
    s_cmp_lt_u32 s60, 8
    s_cbranch_scc1 L_sv_modn_skip
    s_cmp_ge_u32 s60, 12
    s_cbranch_scc1 L_sv_modn_skip
    s_sub_u32 s61, s60, 8
    s_mul_i32 s62, s61, 7168
    v_lshlrev_b32 v4, 4, v1
    v_add_u32 v4, s62, v4
    v_add_u32 v4, {G_MODN}, v4
    v_add_u32 v5, 4096, v4
    s_mul_i32 s62, s61, 3584
    v_lshl_add_u32 v6, v1, 2, s62
    """)
    regs = [8, 12, 16, 20, 24, 96, 100]
    poll(a, "modn", [(regs[i], 4 if i < 4 else 5, (i%4)*1024) for i in range(7)], tmp=(2,3))
    for i in range(7):
        a(f"ds_write_b32 v6, v{regs[i]} offset:{L_MODN+i*256}")
        a(f"ds_write_b32 v6, v{regs[i]+1} offset:{L_MODN+1792+i*256}")
    a("L_sv_modn_skip:")
    stamp(a, 5)
    a(f"""
    s_cmp_lt_u32 s60, 4
    s_cbranch_scc1 L_sv_part_skip
    s_cmp_ge_u32 s60, 8
    s_cbranch_scc1 L_sv_part_skip
    s_lshr_b32 s61, s2, 1
    v_bfe_u32 v2, v0, 7, 1
    v_lshlrev_b32 v2, 4, v2
    v_add_u32 v2, s61, v2
    v_mul_u32_u24 v2, {7*PART_STRIDE}, v2
    v_add_u32 v2, {G_PART}, v2
    v_and_b32 v3, 127, v0
    v_lshl_add_u32 v3, v3, 4, v2
    v_add_u32 v4, {2*PART_STRIDE}, v3
    v_add_u32 v5, {4*PART_STRIDE}, v3
    v_add_u32 v6, {6*PART_STRIDE}, v3
    v_add_u32 v25, 2048, v2
    v_add_u32 v26, {2048+2*PART_STRIDE}, v2
    v_add_u32 v27, {2048+4*PART_STRIDE}, v2
    v_add_u32 v28, {2048+6*PART_STRIDE}, v2
    """)
    mlr = [8, 12, 16, 20, 96, 100, 104]
    mll = [(mlr[0], 25, 0), (mlr[1], 25, PART_STRIDE), (mlr[2], 26, 0), (mlr[3], 26, PART_STRIDE),
           (mlr[4], 27, 0), (mlr[5], 27, PART_STRIDE), (mlr[6], 28, 0)]
    poll(a, "ml", mll, tmp=(29,30), sleep=4)
    a(f"v_max_f32 v29, v{mlr[0]}, v{mlr[1]}")
    for j in range(2, 7):
        a(f"v_max_f32 v29, v29, v{mlr[j]}")
    for j in range(7):
        a(f"v_sub_f32 v{mlr[j]}, v{mlr[j]}, v29")
        a(f"v_exp_f32 v{mlr[j]}, v{mlr[j]}")
    a("s_nop 0")
    a(f"v_mul_f32 v29, v{mlr[0]}, v{mlr[0]+1}")
    for j in range(1, 7):
        a(f"v_fmac_f32 v29, v{mlr[j]}, v{mlr[j]+1}")
    a(f"v_mov_b32 v23, v{mlr[1]}")
    a(f"v_mov_b32 v30, v{mlr[2]}")
    a(f"v_mov_b32 v31, v{mlr[3]}")
    a(f"v_mov_b32 v9, v23")
    a(f"v_mov_b32 v10, v30")
    a(f"v_mov_b32 v11, v31")
    a(f"v_mov_b32 v12, v{mlr[4]}")
    a(f"v_mov_b32 v13, v{mlr[5]}")
    a(f"v_mov_b32 v14, v{mlr[6]}")
    a(f"v_mov_b32 v15, v29")
    dreg = [96, 100, 104, 108, 16, 20, 24]
    poll_masked(a, "pa", [(dreg[0], 3, 0), (dreg[1], 3, PART_STRIDE), (dreg[2], 4, 0), (dreg[3], 4, PART_STRIDE),
                   (dreg[4], 5, 0), (dreg[5], 5, PART_STRIDE), (dreg[6], 6, 0)], tmp=(30,31))
    a(f"v_mul_f32 v28, v8, v{dreg[0]}")
    a(f"v_mul_f32 v29, v8, v{dreg[0]+1}")
    for j in range(1, 7):
        a(f"v_fmac_f32 v28, v{8+j}, v{dreg[j]}")
        a(f"v_fmac_f32 v29, v{8+j}, v{dreg[j]+1}")
    a("""
    v_rcp_f32 v30, v15
    s_nop 0
    v_mul_f32 v12, v28, v30
    v_fma_f32 v13, -v12, v15, v28
    v_fmac_f32 v12, v13, v30
    v_mul_f32 v16, v29, v30
    v_fma_f32 v13, -v16, v15, v29
    v_fmac_f32 v16, v13, v30
    v_cvt_pk_bf16_f32 v12, v12, v16
    """)
    a(f"""
    v_and_b32 v3, 127, v0
    v_lshlrev_b32 v3, 2, v3
    v_bfe_u32 v2, v0, 7, 1
    v_lshl_add_u32 v3, v2, 9, v3
    ds_write_b32 v3, v12 offset:{L_OB}
    v_mov_b32 v31, 0
L_sv_part_skip:
    s_waitcnt lgkmcnt(0)
    s_barrier
    """)
    stamp(a, 6)
    af = [12, 16, 20, 24, 28, 96, 100, 104]
    a(f"""
    s_cmp_ge_u32 s60, 14
    s_cbranch_scc1 L_sv_att_skip
    v_and_b32 v2, 1, v0
    v_lshlrev_b32 v2, 9, v2
    v_bfe_u32 v3, v0, 4, 2
    v_lshl_add_u32 v2, v3, 4, v2
    """)
    for ks in range(8):
        a(f"ds_read_b128 {vr(af[ks],4)}, v2 offset:{L_OB+ks*64}")
    zero(a, 8, 4)
    a("s_nop 1")
    for ks in range(8):
        a(f"s_waitcnt lgkmcnt({7-ks})")
        a(f"v_mfma_f32_16x16x32_bf16 v[8:11], {vr(af[ks],4)}, {vr(32+4*ks,4)}, v[8:11]")
    a(f"""
    s_lshr_b32 s61, s2, 1
    s_mul_i32 s61, s61, 448
    s_and_b32 s62, s2, 1
    s_mul_i32 s62, s62, 224
    s_add_u32 s61, s61, s62
    s_lshl_b32 s62, s60, 4
    s_add_u32 s61, s61, s62
    v_add_u32 v2, s61, v1
    v_lshlrev_b32 v2, 4, v2
    v_add_u32 v2, {G_ATT}, v2
    v_cmp_gt_u32 vcc, 16, v1
    s_and_saveexec_b64 s[64:65], vcc
    s_nop 4
    v_mov_b32 v10, s80
    v_mov_b32 v11, s81
    global_store_dwordx4 v2, v[8:11], s[42:43] sc1
    s_mov_b64 exec, s[64:65]
L_sv_att_skip:
    s_cmp_ge_u32 s2, 28
    s_cbranch_scc1 L_sv_exit
    """)
    stamp(a, 7)
    a(f"""
    v_cmp_gt_u32 vcc, 896, v0
    s_and_saveexec_b64 s[64:65], vcc
    s_cbranch_execz L_sv_h2_end
    v_cmp_le_u32 vcc, 448, v0
    s_nop 1
    v_cndmask_b32 v2, 0, 1, vcc
    v_mul_u32_u24 v3, 448, v2
    v_sub_u32 v3, v0, v3              ; col
    v_mul_u32_u24 v4, {8*448}, v2
    v_add_u32 v4, v4, v3
    v_lshlrev_b32 v4, 4, v4
    v_add_u32 v8, {G_ATT}, v4
    v_mul_u32_u24 v5, 896, v2
    v_add_u32 v5, v5, v3
    v_lshlrev_b32 v5, 2, v5
    """)
    for j in range(1, 8):
        a(f"v_add_u32 v{8+j}, 7168, v{8+j-1}")
    poll_masked(a, "h2", [(32+4*j, 8+j, 0) for j in range(8)], tmp=(2,3))
    sstamp(a, 3)
    for j in range(1, 8):
        a(f"v_pk_add_f32 v[32:33], v[32:33], v[{32+4*j}:{33+4*j}]")
    a(f"""
    ds_write_b32 v5, v32 offset:{L_ATTP}
    ds_write_b32 v5, v33 offset:{L_ATTP+1792}
L_sv_h2_end:
    s_mov_b64 exec, s[64:65]
    s_waitcnt lgkmcnt(0)
    s_barrier
    """)
    if os.environ.get("SUF2"): sstamp(a, 5)
    a(f"""
    s_cmp_ge_u32 s60, 2
    s_cbranch_scc1 L_sv_ln2_skip
    s_mul_i32 s61, s60, 1792
    v_lshl_add_u32 v4, v1, 2, s61
    """)
    for i in range(7):
        a(f"ds_read_b32 v{32+i}, v4 offset:{L_ATTP+i*256}")
        a(f"ds_read_b32 v{40+i}, v4 offset:{L_ATTP+3584+i*256}")
        a(f"ds_read_b32 v{48+i}, v4 offset:{L_X1+i*256}")
        a(f"ds_read_b32 v{8+i}, v4 offset:{L_MODN+i*256}")
        a(f"ds_read_b32 v{15+i}, v4 offset:{L_MODN+3584+i*256}")
        a(f"ds_read_b32 v{22+i}, v4 offset:{L_MODN+7168+i*256}")
    a("s_waitcnt lgkmcnt(0)")
    for i in range(7):
        a(f"v_add_f32 v{32+i}, v{32+i}, v{40+i}")
        rnd_bf16(a, 32+i, 5)
        a(f"v_mul_f32 v{32+i}, v{32+i}, v{8+i}")
        rnd_bf16(a, 32+i, 5)
        a(f"v_add_f32 v{48+i}, v{48+i}, v{32+i}")
        rnd_bf16(a, 48+i, 5)
        a(f"ds_write_b32 v4, v{48+i} offset:{L_X1+i*256}")
    if os.environ.get("SUF2"): sstamp(a, 6)
    ln_stats(a, 48, 56)
    if os.environ.get("SUF2"): sstamp(a, 7)
    a(f"""
    s_mul_i32 s61, s60, 896
    v_lshl_add_u32 v4, v1, 1, s61
    """)
    for i in range(7):
        ln_norm(a, 48+i, 32, 56, 34)
        a(f"v_add_f32 v{22+i}, 1.0, v{22+i}")
        rnd_bf16(a, 22+i, 34)
        a(f"v_mul_f32 v32, v32, v{22+i}")
        rnd_bf16(a, 32, 34)
        a(f"v_add_f32 v32, v32, v{15+i}")
        a(f"v_cvt_pk_bf16_f32 v32, v32, v32")
        a(f"ds_write_b16 v4, v32 offset:{L_HB+i*128}")
    a(f"""
L_sv_ln2_skip:
    s_waitcnt lgkmcnt(0)
    s_barrier
    """)
    stamp(a, 8)
    a(f"""
    v_and_b32 v2, 1, v0
    v_mul_u32_u24 v2, 896, v2
    v_bfe_u32 v3, v0, 4, 2
    v_lshl_add_u32 v2, v3, 4, v2
    s_lshr_b32 s61, s60, 3
    s_mul_i32 s61, s61, 448
    v_add_u32 v2, s61, v2
    """)
    for j in range(7):
        a(f"ds_read_b128 {vr(32+4*j,4)}, v2 offset:{L_HB+j*64}")
    zero(a, 8, 4)
    a("s_nop 1")
    for j in range(7):
        a(f"s_waitcnt lgkmcnt({6-j})")
        a(f"v_mfma_f32_16x16x32_bf16 v[8:11], {vr(32+4*j,4)}, {vr(64+4*j,4)}, v[8:11]")
    a(f"""
    s_lshl_b32 s61, s60, 7
    v_lshl_add_u32 v2, v1, 2, s61
    v_cmp_gt_u32 vcc, 16, v1
    s_and_saveexec_b64 s[64:65], vcc
    s_nop 5
    ds_write_b32 v2, v8 offset:{L_GU}
    ds_write_b32 v2, v9 offset:{L_GU+64}
    s_mov_b64 exec, s[64:65]
    s_waitcnt lgkmcnt(0)
    s_barrier
    """)
    if not os.environ.get("SUF2"): sstamp(a, 5)
    a(f"""
    v_cmp_gt_u32 vcc, 128, v0
    s_and_saveexec_b64 s[64:65], vcc
    s_cbranch_execz L_sv_act_end
    v_bfe_u32 v2, v0, 4, 2
    v_lshlrev_b32 v2, 5, v2
    v_lshrrev_b32 v3, 6, v0
    v_lshl_add_u32 v2, v3, 4, v2
    v_and_b32 v4, 15, v0
    v_add_u32 v2, v2, v4
    v_lshlrev_b32 v2, 2, v2
    ds_read_b32 v32, v2 offset:{L_GU}
    ds_read_b32 v33, v2 offset:{L_GU+8*128}
    ds_read_b32 v64, v2 offset:{L_GU+4*128}
    ds_read_b32 v65, v2 offset:{L_GU+12*128}
    s_waitcnt lgkmcnt(0)
    v_add_f32 v32, v32, v33
    v_add_f32 v64, v64, v65
    """)
    g = 32; u = 64
    rnd_bf16(a, g, 9)
    rnd_bf16(a, u, 9)
    a(f"""
    v_mul_f32 v9, v{g}, v{g}
    v_mul_f32 v9, v9, v{g}
    v_mov_b32 v10, 0x3d372713
    v_fma_f32 v9, v9, v10, v{g}
    v_mul_f32 v9, 0x40135761, v9
    v_exp_f32 v9, v9
    s_nop 0
    v_add_f32 v9, 1.0, v9
    v_rcp_f32 v9, v9
    s_nop 0
    v_fma_f32 v9, v9, -2.0, 1.0
    v_add_f32 v9, 1.0, v9
    v_mul_f32 v9, 0.5, v9
    v_mul_f32 v9, v9, v{g}
    """)
    rnd_bf16(a, 9, 10)
    a(f"""
    v_mul_f32 v{g}, v9, v{u}
    v_cvt_pk_bf16_f32 v{g}, v{g}, v{g}
    v_lshlrev_b32 v2, 1, v0
    ds_write_b16 v2, v{g} offset:{L_CB}
L_sv_act_end:
    s_mov_b64 exec, s[64:65]
    s_waitcnt lgkmcnt(0)
    s_barrier
    """)
    if not os.environ.get("SUF2"): sstamp(a, 6)
    a(f"""
    v_and_b32 v2, 1, v0
    v_lshlrev_b32 v2, 7, v2
    v_bfe_u32 v3, v0, 4, 2
    v_lshl_add_u32 v2, v3, 4, v2
    ds_read_b128 v[32:35], v2 offset:{L_CB}
    ds_read_b128 v[36:39], v2 offset:{L_CB+64}
    """)
    zero(a, 8, 8)
    a(f"""
    s_nop 1
    s_waitcnt lgkmcnt(0)
    v_mfma_f32_16x16x32_bf16 v[8:11], v[32:35], v[112:115], v[8:11]
    v_mfma_f32_16x16x32_bf16 v[12:15], v[32:35], v[120:123], v[12:15]
    v_mfma_f32_16x16x32_bf16 v[8:11], v[36:39], v[116:119], v[8:11]
    v_mfma_f32_16x16x32_bf16 v[12:15], v[36:39], v[124:127], v[12:15]
    s_mul_i32 s61, s2, 448
    s_lshl_b32 s62, s60, 4
    s_add_u32 s61, s61, s62
    v_add_u32 v2, s61, v1
    v_lshlrev_b32 v2, 4, v2
    v_add_u32 v2, {G_DN}, v2
    v_cmp_gt_u32 vcc, 16, v1
    s_and_saveexec_b64 s[64:65], vcc
    s_nop 4
    v_mov_b32 v10, s80
    v_mov_b32 v11, s81
    v_mov_b32 v14, s80
    v_mov_b32 v15, s81
    global_store_dwordx4 v2, v[8:11], s[42:43] sc1
    s_cmp_ge_u32 s60, 12
    s_cbranch_scc1 L_sv_dn_not1
    v_add_u32 v2, 4096, v2
    global_store_dwordx4 v2, v[12:15], s[42:43] sc1
L_sv_dn_not1:
    s_mov_b64 exec, s[64:65]
    """)
    stamp(a, 9)
    a(f"""
    v_cmp_gt_u32 vcc, 448, v0
    s_and_saveexec_b64 s[64:65], vcc
    s_cbranch_execz L_sv_dnp_end
    v_lshrrev_b32 v2, 4, v0
    v_mul_u32_u24 v2, 448, v2
    v_and_b32 v3, 15, v0
    v_add_u32 v2, v2, v3
    s_lshl_b32 s61, s2, 4
    v_add_u32 v2, s61, v2
    v_lshlrev_b32 v2, 4, v2
    v_add_u32 v2, {G_DN}, v2
    """)
    poll(a, "dn", [(32, 2, 0)], tmp=(4,5), sleep=0)
    sstamp(a, 8)
    a(f"""
    v_lshlrev_b32 v4, 3, v0
    ds_write_b64 v4, v[32:33] offset:{L_FIN}
L_sv_dnp_end:
    s_mov_b64 exec, s[64:65]
    s_waitcnt lgkmcnt(0)
    s_barrier
    v_cmp_gt_u32 vcc, 32, v0
    s_and_saveexec_b64 s[64:65], vcc
    s_cbranch_execz L_sv_dn_end
    v_and_b32 v5, 15, v0
    v_lshlrev_b32 v4, 3, v5
    v_lshrrev_b32 v6, 4, v0
    v_lshl_add_u32 v4, v6, 2, v4
    """)
    for s_ in range(28):
        a(f"ds_read_b32 v{32+s_}, v4 offset:{L_FIN+s_*128}")
    a(f"""
    s_lshl_b32 s61, s2, 4
    v_add_u32 v5, s61, v5
    v_mul_u32_u24 v6, 448, v6
    v_add_u32 v5, v5, v6
    v_lshlrev_b32 v6, 2, v5
    v_add_u32 v7, {L_MODN+10752}, v6
    ds_read_b32 v30, v6 offset:{L_X1}
    ds_read_b32 v31, v7
    s_waitcnt lgkmcnt(0)
    """)
    for s_ in range(1, 28):
        a(f"v_add_f32 v32, v32, v{32+s_}")
    rnd_bf16(a, 32, 9)
    a("v_mul_f32 v32, v32, v31")
    rnd_bf16(a, 32, 9)
    a("""
    v_add_f32 v32, v32, v30
    v_cvt_pk_bf16_f32 v32, v32, v32
    v_lshlrev_b32 v5, 1, v5
    global_store_short v5, v32, s[38:39]
L_sv_dn_end:
    s_mov_b64 exec, s[64:65]
L_sv_exit:
    """)
    sstamp(a, 9)
    stamp_store(a, 10)
    a("s_endpgm")

def main(outpath):
    hdr = open("cdna_kernels/" + NAME + ".s.ref").read().split("\n")
    out = []
    for l in hdr:
        if l.startswith("; Override") or l.startswith("; grid=") or l.startswith("; @launch") or l.startswith(".amdgcn"):
            break
        out.append(l)
    out.append(f"; @launch grid=(256,1,1) block=(1024,1,1) lds={LDS_TOTAL}")
    out.append('.amdgcn_target "amdgcn-amd-amdhsa--gfx950"')
    out.append(".text")
    k = NAME + "_kernel"
    a = Asm()
    a.svc = False
    a("""
    s_cmp_ge_u32 s2, 256
    s_cbranch_scc1 L_exit
    s_load_dwordx16 s[16:31], s[0:1], 0
    s_load_dwordx8 s[32:39], s[0:1], 64
    s_load_dwordx4 s[40:43], s[0:1], 96
    """)
    stamp(a, 0)
    a("""
    s_cmp_ge_u32 s2, 32
    s_cbranch_scc1 L_stream
    """)
    a.svc = True
    service(a)
    a.svc = False
    stream(a)
    a("L_exit:\ns_endpgm")
    out.append(f".globl {k}\n.p2align 8\n.type {k},@function\n{k}:\n" + a.text())
    out.append('.section .rodata,"a"')
    out.append(f""".p2align 6
.amdhsa_kernel {k}
  .amdhsa_next_free_vgpr 128
  .amdhsa_next_free_sgpr 102
  .amdhsa_accum_offset 128
  .amdhsa_group_segment_fixed_size 0
  .amdhsa_kernarg_size 112
  .amdhsa_user_sgpr_count 2
  .amdhsa_user_sgpr_kernarg_segment_ptr 1
  .amdhsa_system_sgpr_workgroup_id_x 1
.end_amdhsa_kernel""")
    open(outpath, "w").write("\n".join(out) + "\n")

if __name__ == "__main__":
    main(sys.argv[1] if len(sys.argv) > 1 else "cdna_kernels/" + NAME + ".s")
```

```python
import sys, os
from asmlib import *
from gen1_lib import srd, rnd_bf16, wave_allsum, swap_reduce16, zero

NAME = "adaLN_cond__mha_block_cached__geglu_ffn__decode"
STAMPS = int(os.environ.get("STAMPS", "0"))
MAXPOLL = int(os.environ.get('MAXPOLL', '20000'))

G_MODC = 0x00000
G_Q    = 0x08000
G_MODN = 0x10000
G_PART = 0x20000
PART_STRIDE = 2112
G_ATT  = 0xA0000
G_DN   = 0xC0000
G_STAMP= 0x100000

L_A    = 0x0000
L_S    = 0x1000
L_NONCE= 0x2000
L_X1   = 0x2100
L_Y    = 0x2F00
L_ATTP = 0x3D00
L_MODN = 0x5900
L_FIN  = 0x9100
L_OB   = 0x9F00
L_HB   = 0xA300
L_CB   = 0xAA00
L_GU   = 0xAB00
L_RED2 = 0x9100
L_RED  = 0x3D00
L_STG  = 0xB300
LDS_TOTAL = 0xB300 + 114688

NT = 19
KWIN = int(os.environ.get('KWIN', '32'))
KTAIL = min(3, KWIN-1)
NVP = 5
NVL = int(os.environ.get('NVL', '0'))
L_VB = 0x4800
KR = 32
VP = 108

SUF = int(os.environ.get("SUF", "0"))
def stamp(a, idx):
    if STAMPS and SUF and a.svc:
        m = {0:0, 6:1, 7:2, 8:4, 9:7} if not os.environ.get('SUF2') else {0:0, 6:1, 7:2, 8:4}
        if idx in m:
            a(f"s_memrealtime s[{82+2*m[idx]}:{83+2*m[idx]}]")
        return
    if STAMPS:
        a(f"s_memrealtime s[{82+2*idx}:{83+2*idx}]")
def sstamp(a, idx):
    if STAMPS and SUF:
        a(f"s_memrealtime s[{82+2*idx}:{83+2*idx}]")

def stamp_store(a, n):
    if not STAMPS: return
    a(f"""
    s_waitcnt lgkmcnt(0)
    v_cmp_eq_u32 vcc, 0, v0
    s_and_saveexec_b64 s[60:61], vcc
    s_lshl_b32 s56, s2, 7
    v_mov_b32 v4, s56
    v_add_u32 v4, {G_STAMP}, v4
    """)
    for i in range(n):
        a(f"""
        v_mov_b32 v8, s{82+2*i}
        v_mov_b32 v9, s{83+2*i}
        global_store_dwordx2 v4, v[8:9], s[42:43] offset:{8*i}
        """)
    a("s_mov_b64 exec, s[60:61]")

def poll(a, name, loads, tagl="s80", tagh="s81", tmp=(2,3), sleep=1):
    t0, t1 = tmp
    a(f"s_mov_b32 s79, {MAXPOLL}")
    a(f"L_poll_{name}:")
    for (d, va, off) in loads:
        a(f"global_load_dwordx4 {vr(d,4)}, v{va}, s[42:43] offset:{off} sc1")
    a("s_waitcnt vmcnt(0)")
    first = True
    for (d, va, off) in loads:
        if first:
            a(f"v_xor_b32 v{t0}, {tagl}, v{d+2}")
            first = False
        else:
            a(f"v_xor_b32 v{t1}, {tagl}, v{d+2}")
            a(f"v_or_b32 v{t0}, v{t0}, v{t1}")
        a(f"v_xor_b32 v{t1}, {tagh}, v{d+3}")
        a(f"v_or_b32 v{t0}, v{t0}, v{t1}")
    a(f"""
    v_cmp_ne_u32 vcc, 0, v{t0}
    s_cbranch_vccz L_pollok_{name}
    s_sleep {sleep}
    s_sub_u32 s79, s79, 1
    s_cmp_lg_u32 s79, 0
    s_cbranch_scc1 L_poll_{name}
L_pollok_{name}:
    """)

def poll_masked(a, name, loads, tagl="s80", tagh="s81", tmp=(2,3)):
    t0, t1 = tmp
    ms = [44, 46, 48, 50, 52, 54, 68, 70]
    assert len(loads) <= 8
    a(f"s_mov_b32 s79, {MAXPOLL}")
    a("s_mov_b64 s[74:75], exec")
    for (d, va, off) in loads:
        a(f"global_load_dwordx4 {vr(d,4)}, v{va}, s[42:43] offset:{off} sc1")
    a(f"L_pm_{name}:")
    a("s_waitcnt vmcnt(0)")
    for j, (d, va, off) in enumerate(loads):
        a(f"v_xor_b32 v{t0}, {tagl}, v{d+2}")
        a(f"v_xor_b32 v{t1}, {tagh}, v{d+3}")
        a(f"v_or_b32 v{t0}, v{t0}, v{t1}")
        a(f"v_cmp_ne_u32 s[{ms[j]}:{ms[j]+1}], 0, v{t0}")
    a(f"s_mov_b64 s[72:73], s[{ms[0]}:{ms[0]+1}]")
    for j in range(1, len(loads)):
        a(f"s_or_b64 s[72:73], s[72:73], s[{ms[j]}:{ms[j]+1}]")
    a(f"""
    s_cmp_eq_u64 s[72:73], 0
    s_cbranch_scc1 L_pmok_{name}
    s_sub_u32 s79, s79, 1
    s_cmp_eq_u32 s79, 0
    s_cbranch_scc1 L_pmok_{name}
    """)
    for j, (d, va, off) in enumerate(loads):
        a(f"""
        s_mov_b64 exec, s[{ms[j]}:{ms[j]+1}]
        s_cbranch_execz L_pmsk_{name}_{j}
        global_load_dwordx4 {vr(d,4)}, v{va}, s[42:43] offset:{off} sc1
L_pmsk_{name}_{j}:
        """)
    a(f"""
    s_mov_b64 exec, s[74:75]
    s_branch L_pm_{name}
L_pmok_{name}:
    s_mov_b64 exec, s[74:75]
    """)

def fma_tile(a, w, acc, ap, t):
    for d in range(4):
        a(f"""
        v_lshlrev_b32 v{t}, 16, v{w+d}
        v_and_b32 v{t+1}, 0xffff0000, v{w+d}
        v_pk_fma_f32 v[{acc+2*d}:{acc+2*d+1}], v[{t}:{t+1}], v[{ap}:{ap+1}], v[{acc+2*d}:{acc+2*d+1}] op_sel:[0,0,0] op_sel_hi:[1,0,1]
        v_pk_fma_f32 v[{acc+8+2*d}:{acc+8+2*d+1}], v[{t}:{t+1}], v[{ap}:{ap+1}], v[{acc+8+2*d}:{acc+8+2*d+1}] op_sel:[0,1,0] op_sel_hi:[1,1,1]
        """)

def red_lanes(a, acc, n, nb):
    steps = []
    if nb <= 1: steps.append("quad_perm:[2,3,0,1]")
    if nb <= 2: steps.append("row_ror:4")
    if nb <= 3: steps.append("row_ror:8")
    for m in steps:
        a("s_nop 1")
        for i in range(n):
            a(f"v_add_f32_dpp v{acc+i}, v{acc+i}, v{acc+i} {m} row_mask:0xf bank_mask:0xf")

def red_write(a, acc, nb, base, va=4, vt=5):
    a(f"""
    v_lshrrev_b32 v{va}, 6, v0
    v_lshlrev_b32 v{va}, {6+nb}, v{va}
    v_and_b32 v{vt}, {(1<<nb)-1}, v0
    v_lshl_add_u32 v{va}, v{vt}, 6, v{va}
    v_bfe_u32 v{vt}, v0, 4, 2
    v_lshl_add_u32 v{va}, v{vt}, 4, v{va}
    ds_write_b128 v{va}, {vr(acc,4)} offset:{base}
    """)

def ln_stats(a, xs, T):
    a(f"v_add_f32 v{T}, v{xs}, v{xs+1}")
    for i in range(2, 7):
        a(f"v_add_f32 v{T}, v{T}, v{xs+i}")
    wave_allsum(a, T, T+1)
    a(f"v_mul_f32 v{T}, 0x3b124925, v{T}")
    a(f"v_sub_f32 v{T+2}, v{xs}, v{T}")
    a(f"v_mul_f32 v{T+3}, v{T+2}, v{T+2}")
    for i in range(1, 7):
        a(f"v_sub_f32 v{T+2}, v{xs+i}, v{T}")
        a(f"v_fmac_f32 v{T+3}, v{T+2}, v{T+2}")
    wave_allsum(a, T+3, T+1)
    a(f"v_mul_f32 v{T+3}, 0x3b124925, v{T+3}")
    rnd_bf16(a, T, T+1)
    rnd_bf16(a, T+3, T+1)
    a(f"v_add_f32 v{T+3}, 0x3727c5ac, v{T+3}")
    rnd_bf16(a, T+3, T+1)
    a(f"v_sqrt_f32 v{T+3}, v{T+3}")
    a("s_nop 0")
    rnd_bf16(a, T+3, T+1)
    a(f"v_rcp_f32 v{T+4}, v{T+3}")
    a("s_nop 0")

def ln_norm(a, x, d, T, t):
    a(f"v_sub_f32 v{t}, v{x}, v{T}")
    rnd_bf16(a, t, t+1)
    a(f"v_mul_f32 v{d}, v{t}, v{T+4}")
    a(f"v_fma_f32 v{t+1}, -v{d}, v{T+3}, v{t}")
    a(f"v_fmac_f32 v{d}, v{t+1}, v{T+4}")
    rnd_bf16(a, d, t+1)

def stream(a):
    a(f"""
L_stream:
    {"s_endpgm" if os.environ.get("NOSTREAM") else ""}
    s_sub_u32 s56, s2, 32
    s_mul_hi_u32 s57, s56, 0x24924925
    s_mul_i32 s58, s57, 7
    s_sub_u32 s58, s56, s58
    s_lshl_b32 s59, s57, 21
    s_mul_i32 s61, s58, 300032
    v_lshlrev_b32 v1, 4, v0
    v_add_u32 v1, s61, v1
    s_add_u32 s66, s61, 300032
    s_min_u32 s66, s66, 0x200000
    v_lshrrev_b32 v2, 6, v0
    s_nop 0
    v_readfirstlane_b32 s67, v2
    s_waitcnt lgkmcnt(0)
    s_add_u32 s44, s18, s59
    s_addc_u32 s45, s19, 0
    s_and_b32 s45, s45, 0xffff
    s_mov_b32 s46, s66
    s_mov_b32 s47, 0x00020000
    s_add_u32 s48, s20, s59
    s_addc_u32 s49, s21, 0
    s_and_b32 s49, s49, 0xffff
    s_mov_b32 s50, s66
    s_mov_b32 s51, 0x00020000
    s_mov_b32 s60, 0
    """)
    if os.environ.get("NWAIT"):
        a(f"""
        v_mov_b32 v31, 0
        s_mov_b32 s79, {MAXPOLL}
L_st_nw:
        global_load_dwordx2 v[12:13], v31, s[40:41] sc1
        s_waitcnt vmcnt(0)
        v_cmp_eq_u32 vcc, 0, v12
        s_cbranch_vccz L_st_nwok
        s_sub_u32 s79, s79, 1
        s_cmp_lg_u32 s79, 0
        s_cbranch_scc1 L_st_nw
L_st_nwok:
        """)
    for t in range(NT):
        if t >= KWIN:
            a(f"s_waitcnt vmcnt({KWIN-1})")
        a(f"buffer_load_dwordx4 {vr(KR+4*t,4)}, v1, s[44:47], s60 offen nt")
        if t < NT-1:
            a("s_add_u32 s60, s60, 16384")
    a(f"""
    v_and_b32 v2, 31, v0
    v_lshlrev_b32 v2, 5, v2
    s_lshl_b32 s61, s57, 10
    v_add_u32 v2, s61, v2
    v_add_u32 v3, {G_Q}, v2
    v_mov_b32 v31, 0
    s_mov_b32 s60, 0
    s_waitcnt vmcnt({KTAIL})
    global_load_dwordx2 v[12:13], v31, s[40:41] sc1
    global_load_dwordx4 v[4:7], v3, s[42:43] sc1
    global_load_dwordx4 v[8:11], v3, s[42:43] offset:16 sc1
    """)
    for t in range(NVP):
        a(f"buffer_load_dwordx4 {vr(VP+4*t,4)}, v1, s[48:51], s60 offen nt")
        a("s_add_u32 s60, s60, 16384")
    a(f"""
    v_lshrrev_b32 v2, 6, v0
    s_nop 0
    v_readfirstlane_b32 s64, v2
    s_mul_i32 s64, s64, {NVL*1024}
    s_add_u32 s64, s64, {L_VB}
    """)
    for t in range(NVL):
        a(f"""
        s_add_u32 s65, s64, {t*1024}
        s_mov_b32 m0, s65
        s_nop 0
        buffer_load_dwordx4 v1, s[48:51], s60 offen nt lds
        s_add_u32 s60, s60, 16384
        """)
    a(f"""
    s_mov_b32 s79, {MAXPOLL}
    s_waitcnt vmcnt({NVP+NVL})
L_st_chk:
    v_xor_b32 v14, v12, v6
    v_xor_b32 v15, v13, v7
    v_xor_b32 v16, v12, v10
    v_xor_b32 v17, v13, v11
    v_or3_b32 v14, v14, v15, v16
    v_or_b32 v14, v14, v17
    v_cmp_eq_u32 s[62:63], 0, v12
    v_cmp_ne_u32 vcc, 0, v14
    s_or_b64 vcc, vcc, s[62:63]
    s_cbranch_vccz L_st_ok
    s_sub_u32 s79, s79, 1
    s_cmp_eq_u32 s79, 0
    s_cbranch_scc1 L_st_ok
    s_sleep 4
    global_load_dwordx2 v[12:13], v31, s[40:41] sc1
    global_load_dwordx4 v[4:7], v3, s[42:43] sc1
    global_load_dwordx4 v[8:11], v3, s[42:43] offset:16 sc1
    s_waitcnt vmcnt(0)
    s_branch L_st_chk
L_st_ok:
    v_readfirstlane_b32 s80, v12
    v_readfirstlane_b32 s81, v13
    """)
    stamp(a, 1)
    qf = [4, 5, 8, 9]
    S = 12
    for t in range(NT):
        k = KR + 4*t
        a(f"v_dot2_f32_bf16 v{S+t}, v{k}, v{qf[0]}, 0")
        for d in range(1, 4):
            a(f"v_dot2_f32_bf16 v{S+t}, v{k+d}, v{qf[d]}, v{S+t}")
        if t + NVP + NVL < NT:
            a(f"buffer_load_dwordx4 {vr(k,4)}, v1, s[48:51], s60 offen nt")
            a("s_add_u32 s60, s60, 16384")
    TMP = 88
    a("s_nop 1")
    for m in ["quad_perm:[1,0,3,2]", "quad_perm:[2,3,0,1]", "row_half_mirror", "row_mirror"]:
        for t in range(NT):
            a(f"v_add_f32_dpp v{S+t}, v{S+t}, v{S+t} {m} row_mask:0xf bank_mask:0xf")
        a("s_nop 1")
    for t in range(NT):
        a(f"v_mov_b32 v{TMP+t}, v{S+t}")
    a("s_nop 1")
    for t in range(NT):
        a(f"v_permlane16_swap_b32 v{S+t}, v{TMP+t}")
    for t in range(NT):
        a(f"v_add_f32 v{S+t}, v{S+t}, v{TMP+t}")
    for t in range(NT):
        rnd_bf16(a, S+t, 2)
    a("""
    s_mov_b32 s62, 0x3db8aa3b
    s_mul_i32 s63, s58, 300032
    s_add_u32 s63, s63, 294912
    s_lshl_b32 s67, s67, 10
    s_add_u32 s63, s63, s67
    s_cmp_ge_u32 s63, s66
    s_cselect_b32 s63, 0xff000000, 0
    """)
    for t in range(NT):
        a(f"v_mul_f32 v{S+t}, s62, v{S+t}")
    for t in range(18, NT):
        a(f"v_add_f32 v{S+t}, s63, v{S+t}")
    a(f"v_max_f32 v2, v{S}, v{S+1}")
    for t in range(2, NT):
        a(f"v_max_f32 v2, v2, v{S+t}")
    a("""
    v_mov_b32 v3, v2
    s_nop 1
    v_permlane32_swap_b32 v2, v3
    v_max_f32 v2, v2, v3
    """)
    for t in range(NT):
        a(f"v_sub_f32 v{S+t}, v{S+t}, v2")
        a(f"v_exp_f32 v{S+t}, v{S+t}")
    a("s_nop 0")
    a(f"v_add_f32 v3, v{S}, v{S+1}")
    for t in range(2, NT):
        a(f"v_add_f32 v3, v3, v{S+t}")
    a("""
    v_mov_b32 v6, v3
    s_nop 1
    v_permlane32_swap_b32 v3, v6
    v_add_f32 v3, v3, v6
    """)
    ACC = 88
    zero(a, ACC, 8)
    a(f"""
    v_and_b32 v7, 63, v0
    v_lshlrev_b32 v7, 4, v7
    v_add_u32 v7, s64, v7
    """)
    for t in range(NT):
        if t < NVP:
            k = VP + 4*t
        elif t < NVP + NVL:
            k = 100 + 4*((t-NVP) & 1)
        else:
            k = KR + 4*(t-NVP-NVL)
        a(f"s_waitcnt vmcnt({NT-1-t})")
        if NVP <= t < NVP + NVL:
            a(f"ds_read_b128 {vr(k,4)}, v7 offset:{(t-NVP)*1024}")
            a("s_waitcnt lgkmcnt(0)")
        for d in range(4):
            a(f"""
            v_lshlrev_b32 v96, 16, v{k+d}
            v_and_b32 v97, 0xffff0000, v{k+d}
            v_pk_fma_f32 v[{ACC+2*d}:{ACC+2*d+1}], v[96:97], v[{S+t}:{S+t+1}], v[{ACC+2*d}:{ACC+2*d+1}] op_sel:[0,{(S+t)&1},0] op_sel_hi:[1,{(S+t)&1},1]
            """.replace(f"v[{S+t}:{S+t+1}]", f"v[{(S+t)&~1}:{((S+t)&~1)+1}]"))
    stamp(a, 2)
    a("s_nop 1")
    for i in range(4):
        a(f"v_permlane32_swap_b32 v{ACC+i}, v{ACC+4+i}")
    for i in range(4):
        a(f"v_add_f32 v{ACC+i}, v{ACC+i}, v{ACC+4+i}")
    a(f"""
    v_and_b32 v4, 31, v0
    v_lshlrev_b32 v4, 5, v4
    v_bfe_u32 v5, v0, 5, 1
    v_lshl_add_u32 v4, v5, 4, v4
    v_lshrrev_b32 v5, 6, v0
    v_lshl_add_u32 v4, v5, 10, v4
    ds_write_b128 v4, {vr(ACC,4)}
    v_lshlrev_b32 v5, 3, v5
    ds_write_b64 v5, v[2:3] offset:16384
    s_waitcnt lgkmcnt(0)
    s_barrier
    v_cmp_gt_u32 vcc, 128, v0
    s_and_saveexec_b64 s[60:61], vcc
    s_cbranch_execz L_st_end
    v_mov_b32 v5, 0
    """)
    for w in range(8):
        a(f"ds_read_b128 {vr(32+4*w,4)}, v5 offset:{16384+16*w}")
    a("v_lshlrev_b32 v4, 3, v0")
    for w in range(16):
        a(f"ds_read_b64 {vr(64+2*w,2)}, v4 offset:{w*1024}")
    a("s_waitcnt lgkmcnt(0)")
    a("v_max_f32 v8, v32, v34")
    for w in range(2, 16):
        a(f"v_max_f32 v8, v8, v{32+2*w}")
    zero(a, 9, 1)
    zero(a, 12, 2)
    for w in range(16):
        a(f"""
        v_sub_f32 v11, v{32+2*w}, v8
        v_exp_f32 v11, v11
        s_nop 0
        v_fmac_f32 v9, v11, v{33+2*w}
        v_fmac_f32 v12, v11, v{64+2*w}
        v_fmac_f32 v13, v11, v{65+2*w}
        """)
    a(f"""
    s_mul_i32 s56, s56, {PART_STRIDE}
    s_add_u32 s56, s56, {G_PART}
    v_lshlrev_b32 v4, 4, v0
    v_add_u32 v4, s56, v4
    v_mov_b32 v14, s80
    v_mov_b32 v15, s81
    v_mov_b32 v10, s80
    v_mov_b32 v11, s81
    global_store_dwordx4 v4, v[12:15], s[42:43] sc1
    v_cmp_eq_u32 vcc, 0, v0
    s_and_b64 exec, exec, vcc
    global_store_dwordx4 v4, v[8:11], s[42:43] offset:2048 sc1
L_st_end:
    s_mov_b64 exec, s[60:61]
    """)
    stamp(a, 3)
    stamp_store(a, 4)
    a("s_endpgm")

def service(a):
    a("""
    v_lshrrev_b32 v1, 6, v0
    s_nop 0
    v_readfirstlane_b32 s60, v1      ; wave
    v_and_b32 v1, 63, v0
    v_mov_b32 v31, 0
    s_waitcnt lgkmcnt(0)
    """)
    srd(a, 44, 34, 1792)
    srd(a, 48, 36, 448*5376)
    srd(a, 52, 22, 448*8192)
    a("""
    s_cmp_lg_u32 s60, 15
    s_cbranch_scc1 L_sv_nononce
    s_memrealtime s[62:63]
    s_waitcnt lgkmcnt(0)
    s_or_b32 s62, s62, 1
    v_mov_b32 v8, s62
    v_mov_b32 v9, s63
    v_mov_b32 v10, 0
    v_mov_b32 v11, 0
    s_mov_b64 s[64:65], exec
    s_mov_b64 exec, 1
    global_atomic_cmpswap_x2 v[12:13], v31, v[8:11], s[40:41] sc0 sc1
    s_mov_b64 exec, s[64:65]
L_sv_nononce:
    s_cmp_ge_u32 s60, 2
    s_cbranch_scc1 L_sv_nox
    s_mul_i32 s61, s60, 896
    v_lshl_add_u32 v2, v1, 1, s61
    """)
    for i in range(7):
        a(f"global_load_ushort v{60+i}, v2, s[16:17] offset:{i*128}")
    a("""
L_sv_nox:
    v_lshlrev_b32 v2, 1, v0
    buffer_load_ushort v28, v2, s[44:47], 0 offen
    ; wmodc: cg=t&7 (v30), rg=t>>3 (v6); cgp = s%14, kh = s/14
    v_and_b32 v30, 7, v0
    v_lshrrev_b32 v6, 3, v0
    v_mul_u32_u24 v3, 5376, v6
    v_lshl_add_u32 v3, v30, 4, v3
    s_cmp_ge_u32 s2, 14
    s_cselect_b32 s56, 1, 0              ; kh
    s_mul_i32 s57, s56, 14
    s_sub_u32 s57, s2, s57               ; cgp
    s_mul_i32 s58, s56, 1204224          ; kh*224*5376
    s_lshl_b32 s59, s57, 7
    s_add_u32 s58, s58, s59
    s_cmp_ge_u32 s2, 28
    s_cselect_b32 s58, 0x7f000000, s58
    s_add_u32 s59, s58, 688128
    v_mov_b32 v4, 0x7f000000
    v_cmp_gt_u32 vcc, 96, v6
    s_nop 1
    v_cndmask_b32 v4, v4, v3, vcc
    buffer_load_dwordx4 v[16:19], v3, s[48:51], s58 offen nt
    buffer_load_dwordx4 v[20:23], v4, s[48:51], s59 offen nt
    s_lshl_b32 s61, s2, 6
    v_mov_b32 v126, s61
    global_load_dword v127, v126, s[42:43] sc1
    v_cmp_le_u32 vcc, 448, v0
    s_nop 1
    v_cndmask_b32 v2, 0, 1, vcc
    v_mul_u32_u24 v3, 448, v2
    v_sub_u32 v3, v0, v3
    v_lshl_add_u32 v2, v3, 1, v2
    v_lshlrev_b32 v2, 2, v2
    v_lshlrev_b32 v3, 2, v0
    v_cmp_le_u32 vcc, 896, v0
    s_nop 1
    v_cndmask_b32 v2, v2, v3, vcc
    v_mov_b32 v5, 0
    s_cmp_ge_u32 s60, 14
    s_cbranch_scc1 L_sv_nocwait
    s_waitcnt vmcnt(3)
    v_lshlrev_b32 v5, 16, v28
L_sv_nocwait:
    v_mul_f32 v3, 0xbfb8aa3b, v5
    v_exp_f32 v3, v3
    s_nop 0
    v_add_f32 v3, 1.0, v3
    v_rcp_f32 v3, v3
    s_nop 0
    v_mul_f32 v5, v5, v3
    """)
    rnd_bf16(a, 5, 3)
    a(f"""
    ds_write_b32 v2, v5 offset:{L_S}
    s_cmp_lt_u32 s60, 14
    s_cbranch_scc1 L_sv_nopad
    ds_write_b32 v2, v5 offset:{L_A}
L_sv_nopad:
    s_waitcnt lgkmcnt(0)
    s_barrier
    v_lshrrev_b32 v7, 4, v0
    v_lshlrev_b32 v3, 13, v7
    v_and_b32 v4, 15, v0
    v_lshl_add_u32 v3, v4, 4, v3
    s_lshl_b32 s61, s2, 8
    """)
    for i in range(7):
        a(f"buffer_load_dwordx4 {vr(96+4*i,4)}, v3, s[52:55], s61 offen nt")
        a("s_add_u32 s61, s61, 524288")
    a(f"""
    s_mul_i32 s61, s56, 1792
    v_lshl_add_u32 v4, v6, 3, s61
    ds_read_b64 v[24:25], v4 offset:{L_S}
    ds_read_b64 v[26:27], v4 offset:{L_S+1024}
    """)
    zero(a, 32, 16)
    a("s_waitcnt vmcnt(8) lgkmcnt(0)")
    stamp(a, 1)
    fma_tile(a, 16, 32, 24, 28)
    fma_tile(a, 20, 32, 26, 28)
    red_lanes(a, 32, 16, 3)
    swap_reduce16(a, 32)
    red_write(a, 32, 3, L_RED)
    a(f"""
    s_cmp_lg_u32 s60, 15
    s_cbranch_scc1 L_sv_nononce2
    v_cmp_eq_u32 vcc, 0, v12
    s_nop 1
    v_cndmask_b32 v12, v12, v8, vcc
    v_cndmask_b32 v13, v13, v9, vcc
    s_mov_b64 s[64:65], exec
    s_mov_b64 exec, 1
    ds_write_b64 v31, v[12:13] offset:{L_NONCE}
    s_mov_b64 exec, s[64:65]
L_sv_nononce2:
    s_cmp_ge_u32 s60, 2
    s_cbranch_scc1 L_sv_noy
    """)
    for i in range(7):
        a(f"v_lshlrev_b32 v{60+i}, 16, v{60+i}")
    a(f"""
    s_mul_i32 s61, s60, 1792
    v_lshl_add_u32 v4, v1, 2, s61
    """)
    for i in range(7):
        a(f"ds_write_b32 v4, v{60+i} offset:{L_X1+i*256}")
    ln_stats(a, 60, 8)
    a(f"""
    v_lshlrev_b32 v4, 3, v1
    s_lshl_b32 s61, s60, 2
    v_add_u32 v4, s61, v4
    """)
    for i in range(7):
        ln_norm(a, 60+i, 14, 8, 16)
        a(f"ds_write_b32 v4, v14 offset:{L_Y+i*512}")
    a(f"""
L_sv_noy:
    s_waitcnt lgkmcnt(0)
    """)
    if os.environ.get("WSTAMP"):
        a(f"""
        s_memrealtime s[70:71]
        s_waitcnt lgkmcnt(0)
        s_lshl_b32 s72, s2, 8
        s_lshl_b32 s73, s60, 4
        s_add_u32 s72, s72, s73
        s_add_u32 s72, s72, {G_STAMP+0x10000}
        v_mov_b32 v124, s72
        v_mov_b32 v126, s70
        v_mov_b32 v127, s71
        global_store_dwordx2 v124, v[126:127], s[42:43]
        """)
    a(f"""
    s_barrier
    ds_read_b64 v[2:3], v31 offset:{L_NONCE}
    s_waitcnt lgkmcnt(0)
    v_readfirstlane_b32 s80, v2
    v_readfirstlane_b32 s81, v3
    s_cmp_ge_u32 s2, 28
    s_cbranch_scc1 L_sv_modc_done
    v_cmp_gt_u32 vcc, 64, v0
    s_and_saveexec_b64 s[64:65], vcc
    s_cbranch_execz L_sv_modc_end
    v_lshrrev_b32 v2, 3, v0
    v_lshlrev_b32 v2, 4, v2
    v_and_b32 v3, 7, v0
    v_add_u32 v2, v2, v3
    v_lshlrev_b32 v2, 2, v2
    """)
    for w in range(16):
        a(f"ds_read_b32 v{32+w}, v2 offset:{L_RED+w*512}")
        a(f"ds_read_b32 v{48+w}, v2 offset:{L_RED+w*512+32}")
    a("s_waitcnt lgkmcnt(0)")
    for w in range(1, 16):
        a(f"v_add_f32 v32, v32, v{32+w}")
        a(f"v_add_f32 v48, v48, v{48+w}")
    a(f"""
    v_mov_b32 v33, v48
    v_mov_b32 v34, s80
    v_mov_b32 v35, s81
    s_mul_i32 s61, s56, 896
    s_lshl_b32 s62, s57, 6
    s_add_u32 s61, s61, s62
    v_add_u32 v3, s61, v0
    v_lshlrev_b32 v3, 4, v3
    global_store_dwordx4 v3, v[32:35], s[42:43] offset:{G_MODC} sc1
L_sv_modc_end:
    s_mov_b64 exec, s[64:65]
L_sv_modc_done:
    """)
    stamp(a, 2)
    srd(a, 72, 24, 4096*896)
    a(f"""
    s_cmp_lt_u32 s60, 8
    s_cbranch_scc1 L_sv_nowodma
    s_sub_u32 s61, s60, 8
    s_mul_i32 s62, s61, 896            ; first l = (w-8)*14*64
    v_add_u32 v2, s62, v1
    s_mov_b32 s63, 0x4924925
    s_mov_b32 s63, 0x924924A
    v_mul_hi_u32 v3, v2, s63           ; row
    v_mul_u32_u24 v4, 28, v3
    v_sub_u32 v4, v2, v4               ; cg
    s_lshr_b32 s62, s2, 1
    s_mul_i32 s62, s62, 229376
    s_and_b32 s63, s2, 1
    s_mul_i32 s63, s63, 448
    s_add_u32 s62, s62, s63            ; soffset
    s_mul_i32 s61, s61, {14*1024}
    s_add_u32 s61, s61, {L_STG}
    """)
    for i in range(14):
        a(f"""
        v_mul_u32_u24 v5, 896, v3
        v_lshl_add_u32 v5, v4, 4, v5
        s_mov_b32 m0, s61
        s_add_u32 s61, s61, 1024
        buffer_load_dwordx4 v5, s[72:75], s62 offen nt lds
        """)
        if i < 13:
            a("""
            v_add_u32 v3, 2, v3
            v_add_u32 v4, 8, v4
            v_cmp_le_u32 vcc, 28, v4
            v_subrev_u32 v6, 28, v4
            s_nop 0
            v_addc_co_u32 v3, vcc, 0, v3, vcc
            v_cmp_le_u32 vcc, 28, v4
            s_nop 1
            v_cndmask_b32 v4, v4, v6, vcc
            """)
    a(f"""
L_sv_nowodma:
    """)
    a(f"""
    v_cmp_gt_u32 vcc, 448, v0
    s_and_saveexec_b64 s[64:65], vcc
    s_cbranch_execz L_sv_h_end
    v_lshlrev_b32 v4, 4, v0
    v_add_u32 v5, 7168, v4
    v_add_u32 v6, 14336, v4
    v_add_u32 v29, 21504, v4
    v_lshlrev_b32 v30, 3, v0
    ds_read_b64 v[24:25], v30 offset:{L_Y}
    """)
    poll(a, "modc", [(8, 4, G_MODC), (12, 5, G_MODC), (16, 6, G_MODC), (20, 29, G_MODC)], tmp=(2,3))
    a("s_waitcnt lgkmcnt(0)")
    for b in range(2):
        a(f"v_add_f32 v{8+b}, v{8+b}, v{16+b}")
        rnd_bf16(a, 8+b, 2)
        a(f"v_add_f32 v{12+b}, v{12+b}, v{20+b}")
        rnd_bf16(a, 12+b, 2)
        a(f"v_add_f32 v{12+b}, 1.0, v{12+b}")
        rnd_bf16(a, 12+b, 2)
        a(f"v_mul_f32 v{12+b}, v{24+b}, v{12+b}")
        rnd_bf16(a, 12+b, 2)
        a(f"v_add_f32 v{12+b}, v{12+b}, v{8+b}")
        rnd_bf16(a, 12+b, 2)
    a(f"""
    ds_write_b64 v30, v[12:13] offset:{L_A}
L_sv_h_end:
    s_mov_b64 exec, s[64:65]
    s_waitcnt lgkmcnt(0)
    s_barrier
    v_lshlrev_b32 v4, 3, v7
    """)
    stamp(a, 3)
    for i in range(7):
        a(f"ds_read_b64 {vr(8+2*i,2)}, v4 offset:{L_A+i*512}")
    zero(a, 32, 16)
    a("""
    s_cmp_lt_u32 s60, 8
    s_cbranch_scc1 L_sv_q8a
    s_waitcnt vmcnt(14) lgkmcnt(0)
    s_branch L_sv_q8b
L_sv_q8a:
    s_waitcnt vmcnt(0) lgkmcnt(0)
L_sv_q8b:
    """)
    for i in range(7):
        fma_tile(a, 96+4*i, 32, 8+2*i, 28)
    swap_reduce16(a, 32)
    red_write(a, 32, 4, L_RED)
    a(f"""
    s_waitcnt lgkmcnt(0)
    s_barrier
    v_cmp_gt_u32 vcc, 64, v0
    s_and_saveexec_b64 s[64:65], vcc
    s_cbranch_execz L_sv_q_end
    v_bfe_u32 v2, v0, 1, 4
    v_lshlrev_b32 v2, 4, v2
    v_lshrrev_b32 v3, 5, v0
    v_lshl_add_u32 v2, v3, 3, v2
    v_and_b32 v4, 1, v0
    v_lshl_add_u32 v2, v4, 2, v2
    v_lshlrev_b32 v2, 2, v2
    """)
    for w in range(16):
        a(f"ds_read_b128 {vr(32+4*w,4)}, v2 offset:{L_RED+w*1024}")
    a("s_waitcnt lgkmcnt(0)")
    for w in range(1, 16):
        a(f"v_pk_add_f32 v[32:33], v[32:33], v[{32+4*w}:{33+4*w}]")
        a(f"v_pk_add_f32 v[34:35], v[34:35], v[{34+4*w}:{35+4*w}]")
    a(f"""
    v_cvt_pk_bf16_f32 v32, v32, v33
    v_cvt_pk_bf16_f32 v33, v34, v35
    v_mov_b32 v34, s80
    v_mov_b32 v35, s81
    v_lshlrev_b32 v3, 10, v3
    v_and_b32 v4, 31, v0
    v_add_u32 v3, v3, v4
    s_lshl_b32 s61, s2, 5
    v_add_u32 v3, s61, v3
    v_lshlrev_b32 v3, 4, v3
    v_add_u32 v3, {G_Q}, v3
    global_store_dwordx4 v3, v[32:35], s[42:43] sc1
L_sv_q_end:
    s_mov_b64 exec, s[64:65]
    """)
    stamp(a, 4)
    srd(a, 44, 24, 4096*896)
    srd(a, 52, 28, 448*3584)
    a("""
    v_and_b32 v2, 7, v0
    v_lshrrev_b32 v6, 3, v0
    v_mul_u32_u24 v3, 5376, v6
    v_lshl_add_u32 v3, v2, 4, v3
    s_lshl_b32 s61, s2, 7
    s_add_u32 s61, s61, 1792
    s_cmp_ge_u32 s2, 28
    s_cselect_b32 s61, 0x7f000000, s61
    """)
    for i in range(4):
        a(f"buffer_load_dwordx4 {vr(96+4*i,4)}, v3, s[48:51], s61 offen nt")
        if i < 3: a("s_add_u32 s61, s61, 688128")
    a(f"""
    v_lshlrev_b32 v4, 3, v6
    ds_read_b64 v[24:25], v4 offset:{L_S}
    ds_read_b64 v[26:27], v4 offset:{L_S+1024}
    ds_read_b64 v[28:29], v4 offset:{L_S+2048}
    ds_read_b64 v[30:31], v4 offset:{L_S+3072}
    """)
    zero(a, 8, 16)
    a("s_waitcnt vmcnt(0) lgkmcnt(0)")
    for i in range(4):
        fma_tile(a, 96+4*i, 8, 24+2*i, 2)
    red_lanes(a, 8, 16, 3)
    swap_reduce16(a, 8)
    red_write(a, 8, 3, L_RED2)
    a(f"""
    s_waitcnt lgkmcnt(0)
    s_barrier
    s_cmp_ge_u32 s2, 28
    s_cbranch_scc1 L_sv_modn_done
    v_cmp_gt_u32 vcc, 64, v0
    s_and_saveexec_b64 s[64:65], vcc
    s_cbranch_execz L_sv_modn_end
    v_lshrrev_b32 v2, 3, v0
    v_lshlrev_b32 v2, 4, v2
    v_and_b32 v3, 7, v0
    v_add_u32 v2, v2, v3
    v_lshlrev_b32 v2, 2, v2
    """)
    for w in range(16):
        a(f"ds_read_b32 v{8+w}, v2 offset:{L_RED2+w*512}")
        a(f"ds_read_b32 v{96+w}, v2 offset:{L_RED2+w*512+32}")
    a("s_waitcnt lgkmcnt(0)")
    for w in range(1, 16):
        a(f"v_add_f32 v8, v8, v{8+w}")
        a(f"v_add_f32 v96, v96, v{96+w}")
    rnd_bf16(a, 8, 4)
    rnd_bf16(a, 96, 4)
    a(f"""
    v_mov_b32 v9, v96
    v_mov_b32 v10, s80
    v_mov_b32 v11, s81
    s_lshl_b32 s61, s2, 6
    v_add_u32 v3, s61, v0
    v_lshlrev_b32 v3, 4, v3
    v_add_u32 v3, {G_MODN}, v3
    global_store_dwordx4 v3, v[8:11], s[42:43] sc1
L_sv_modn_end:
    s_mov_b64 exec, s[64:65]
L_sv_modn_done:
    """)
    srd(a, 44, 28, 448*3584)
    srd(a, 52, 30, 448*3584)
    srd(a, 68, 32, 1792*896)
    a(f"""
    v_bfe_u32 v24, v0, 4, 2
    v_lshlrev_b32 v24, 3, v24
    v_bfe_u32 v25, v0, 2, 2
    v_add_u32 v24, v24, v25
    v_and_b32 v25, 3, v0
    v_lshlrev_b32 v25, 3, v25
    s_waitcnt vmcnt(0)
    s_barrier
    s_cmp_ge_u32 s60, 14
    s_cbranch_scc1 L_sv_w1_skip
    v_mul_u32_u24 v3, 448, v24
    v_add_u32 v3, v3, v25
    s_lshl_b32 s61, s60, 5
    s_add_u32 s61, s61, {L_STG}
    v_add_u32 v3, s61, v3
    v_add_u32 v2, {4*14336}, v3
    """)
    for ks in range(8):
        b = 3 if ks < 4 else 2
        a(f"ds_read_b64_tr_b16 v[{32+4*ks}:{33+4*ks}], v{b} offset:{(ks%4)*14336}")
        a(f"ds_read_b64_tr_b16 v[{34+4*ks}:{35+4*ks}], v{b} offset:{(ks%4)*14336+1792}")
    a(f"""
L_sv_w1_skip:
    s_waitcnt lgkmcnt(0)
    s_barrier
    s_cmp_ge_u32 s2, 28
    s_cbranch_scc1 L_sv_w23_skip
    v_lshrrev_b32 v3, 3, v1
    v_mul_u32_u24 v3, 3584, v3
    v_and_b32 v4, 7, v1
    v_lshl_add_u32 v3, v4, 4, v3
    s_and_b32 s61, s60, 7
    s_mul_i32 s62, s61, {7*8*3584}
    s_lshl_b32 s63, s2, 7
    s_add_u32 s62, s62, s63            ; soffset
    s_mul_i32 s61, s60, {7*1024}
    s_add_u32 s61, s61, {L_STG}
    s_cmp_ge_u32 s60, 8
    s_cbranch_scc1 L_sv_w2_up
    """)
    for i in range(7):
        a(f"""
        s_mov_b32 m0, s61
        s_add_u32 s61, s61, 1024
        buffer_load_dwordx4 v3, s[44:47], s62 offen nt lds
        s_add_u32 s62, s62, {8*3584}
        """)
    a("""
    s_branch L_sv_w2_done
L_sv_w2_up:
    """)
    for i in range(7):
        a(f"""
        s_mov_b32 m0, s61
        s_add_u32 s61, s61, 1024
        buffer_load_dwordx4 v3, s[52:55], s62 offen nt lds
        s_add_u32 s62, s62, {8*3584}
        """)
    a(f"""
L_sv_w2_done:
    s_waitcnt vmcnt(0)
    s_barrier
    v_lshlrev_b32 v3, 7, v24
    v_add_u32 v3, v3, v25
    s_and_b32 s61, s60, 3
    s_lshl_b32 s61, s61, 5
    s_bfe_u32 s62, s60, 0x10002
    s_mul_i32 s62, s62, 57344
    s_add_u32 s61, s61, s62
    s_lshr_b32 s62, s60, 3
    s_mul_i32 s62, s62, {7*32*128}
    s_add_u32 s61, s61, s62
    s_add_u32 s61, s61, {L_STG}
    v_add_u32 v3, s61, v3
    """)
    for j in range(7):
        a(f"ds_read_b64_tr_b16 v[{64+4*j}:{65+4*j}], v3 offset:{j*4096}")
        a(f"ds_read_b64_tr_b16 v[{66+4*j}:{67+4*j}], v3 offset:{j*4096+512}")
    a(f"""
    s_waitcnt lgkmcnt(0)
    s_barrier
    s_cmp_ge_u32 s60, 14
    s_cbranch_scc1 L_sv_w3_nodma
    v_lshlrev_b32 v3, 4, v1
    s_mul_i32 s62, s2, 57344
    s_lshl_b32 s61, s60, 12
    s_add_u32 s62, s62, s61
    s_add_u32 s61, s61, {L_STG}
    """)
    for i in range(4):
        a(f"""
        s_mov_b32 m0, s61
        s_add_u32 s61, s61, 1024
        buffer_load_dwordx4 v3, s[68:71], s62 offen nt lds
        s_add_u32 s62, s62, 1024
        """)
    a(f"""
L_sv_w3_nodma:
    s_waitcnt vmcnt(0)
    s_barrier
    v_mul_u32_u24 v3, 896, v24
    v_add_u32 v3, v3, v25
    s_lshl_b32 s61, s60, 5
    s_add_u32 s61, s61, {L_STG}
    v_add_u32 v3, s61, v3
    """)
    for tl in range(2):
        for ks in range(2):
            r = 112 + 8*tl + 4*ks
            a(f"ds_read_b64_tr_b16 v[{r}:{r+1}], v3 offset:{tl*512 + ks*28672}")
            a(f"ds_read_b64_tr_b16 v[{r+2}:{r+3}], v3 offset:{tl*512 + ks*28672 + 3584}")
    a(f"""
L_sv_w23_skip:
    s_waitcnt lgkmcnt(0)
    v_mov_b32 v31, 0
    s_cmp_lt_u32 s60, 8
    s_cbranch_scc1 L_sv_modn_skip
    s_cmp_ge_u32 s60, 12
    s_cbranch_scc1 L_sv_modn_skip
    s_sub_u32 s61, s60, 8
    s_mul_i32 s62, s61, 7168
    v_lshlrev_b32 v4, 4, v1
    v_add_u32 v4, s62, v4
    v_add_u32 v4, {G_MODN}, v4
    v_add_u32 v5, 4096, v4
    s_mul_i32 s62, s61, 3584
    v_lshl_add_u32 v6, v1, 2, s62
    """)
    regs = [8, 12, 16, 20, 24, 96, 100]
    poll(a, "modn", [(regs[i], 4 if i < 4 else 5, (i%4)*1024) for i in range(7)], tmp=(2,3))
    for i in range(7):
        a(f"ds_write_b32 v6, v{regs[i]} offset:{L_MODN+i*256}")
        a(f"ds_write_b32 v6, v{regs[i]+1} offset:{L_MODN+1792+i*256}")
    a("L_sv_modn_skip:")
    stamp(a, 5)
    a(f"""
    s_cmp_lt_u32 s60, 4
    s_cbranch_scc1 L_sv_part_skip
    s_cmp_ge_u32 s60, 8
    s_cbranch_scc1 L_sv_part_skip
    s_lshr_b32 s61, s2, 1
    v_bfe_u32 v2, v0, 7, 1
    v_lshlrev_b32 v2, 4, v2
    v_add_u32 v2, s61, v2
    v_mul_u32_u24 v2, {7*PART_STRIDE}, v2
    v_add_u32 v2, {G_PART}, v2
    v_and_b32 v3, 127, v0
    v_lshl_add_u32 v3, v3, 4, v2
    v_add_u32 v4, {2*PART_STRIDE}, v3
    v_add_u32 v5, {4*PART_STRIDE}, v3
    v_add_u32 v6, {6*PART_STRIDE}, v3
    v_add_u32 v25, 2048, v2
    v_add_u32 v26, {2048+2*PART_STRIDE}, v2
    v_add_u32 v27, {2048+4*PART_STRIDE}, v2
    v_add_u32 v28, {2048+6*PART_STRIDE}, v2
    """)
    mlr = [8, 12, 16, 20, 96, 100, 104]
    mll = [(mlr[0], 25, 0), (mlr[1], 25, PART_STRIDE), (mlr[2], 26, 0), (mlr[3], 26, PART_STRIDE),
           (mlr[4], 27, 0), (mlr[5], 27, PART_STRIDE), (mlr[6], 28, 0)]
    poll(a, "ml", mll, tmp=(29,30), sleep=4)
    a(f"v_max_f32 v29, v{mlr[0]}, v{mlr[1]}")
    for j in range(2, 7):
        a(f"v_max_f32 v29, v29, v{mlr[j]}")
    for j in range(7):
        a(f"v_sub_f32 v{mlr[j]}, v{mlr[j]}, v29")
        a(f"v_exp_f32 v{mlr[j]}, v{mlr[j]}")
    a("s_nop 0")
    a(f"v_mul_f32 v29, v{mlr[0]}, v{mlr[0]+1}")
    for j in range(1, 7):
        a(f"v_fmac_f32 v29, v{mlr[j]}, v{mlr[j]+1}")
    a(f"v_mov_b32 v23, v{mlr[1]}")
    a(f"v_mov_b32 v30, v{mlr[2]}")
    a(f"v_mov_b32 v31, v{mlr[3]}")
    a(f"v_mov_b32 v9, v23")
    a(f"v_mov_b32 v10, v30")
    a(f"v_mov_b32 v11, v31")
    a(f"v_mov_b32 v12, v{mlr[4]}")
    a(f"v_mov_b32 v13, v{mlr[5]}")
    a(f"v_mov_b32 v14, v{mlr[6]}")
    a(f"v_mov_b32 v15, v29")
    dreg = [96, 100, 104, 108, 16, 20, 24]
    poll_masked(a, "pa", [(dreg[0], 3, 0), (dreg[1], 3, PART_STRIDE), (dreg[2], 4, 0), (dreg[3], 4, PART_STRIDE),
                   (dreg[4], 5, 0), (dreg[5], 5, PART_STRIDE), (dreg[6], 6, 0)], tmp=(30,31))
    a(f"v_mul_f32 v28, v8, v{dreg[0]}")
    a(f"v_mul_f32 v29, v8, v{dreg[0]+1}")
    for j in range(1, 7):
        a(f"v_fmac_f32 v28, v{8+j}, v{dreg[j]}")
        a(f"v_fmac_f32 v29, v{8+j}, v{dreg[j]+1}")
    a("""
    v_rcp_f32 v30, v15
    s_nop 0
    v_mul_f32 v12, v28, v30
    v_fma_f32 v13, -v12, v15, v28
    v_fmac_f32 v12, v13, v30
    v_mul_f32 v16, v29, v30
    v_fma_f32 v13, -v16, v15, v29
    v_fmac_f32 v16, v13, v30
    v_cvt_pk_bf16_f32 v12, v12, v16
    """)
    a(f"""
    v_and_b32 v3, 127, v0
    v_lshlrev_b32 v3, 2, v3
    v_bfe_u32 v2, v0, 7, 1
    v_lshl_add_u32 v3, v2, 9, v3
    ds_write_b32 v3, v12 offset:{L_OB}
    v_mov_b32 v31, 0
L_sv_part_skip:
    s_waitcnt lgkmcnt(0)
    s_barrier
    """)
    stamp(a, 6)
    af = [12, 16, 20, 24, 28, 96, 100, 104]
    a(f"""
    s_cmp_ge_u32 s60, 14
    s_cbranch_scc1 L_sv_att_skip
    v_and_b32 v2, 1, v0
    v_lshlrev_b32 v2, 9, v2
    v_bfe_u32 v3, v0, 4, 2
    v_lshl_add_u32 v2, v3, 4, v2
    """)
    for ks in range(8):
        a(f"ds_read_b128 {vr(af[ks],4)}, v2 offset:{L_OB+ks*64}")
    zero(a, 8, 4)
    a("s_nop 1")
    for ks in range(8):
        a(f"s_waitcnt lgkmcnt({7-ks})")
        a(f"v_mfma_f32_16x16x32_bf16 v[8:11], {vr(af[ks],4)}, {vr(32+4*ks,4)}, v[8:11]")
    a(f"""
    s_lshr_b32 s61, s2, 1
    s_mul_i32 s61, s61, 448
    s_and_b32 s62, s2, 1
    s_mul_i32 s62, s62, 224
    s_add_u32 s61, s61, s62
    s_lshl_b32 s62, s60, 4
    s_add_u32 s61, s61, s62
    v_add_u32 v2, s61, v1
    v_lshlrev_b32 v2, 4, v2
    v_add_u32 v2, {G_ATT}, v2
    v_cmp_gt_u32 vcc, 16, v1
    s_and_saveexec_b64 s[64:65], vcc
    s_nop 4
    v_mov_b32 v10, s80
    v_mov_b32 v11, s81
    global_store_dwordx4 v2, v[8:11], s[42:43] sc1
    s_mov_b64 exec, s[64:65]
L_sv_att_skip:
    s_cmp_ge_u32 s2, 28
    s_cbranch_scc1 L_sv_exit
    """)
    stamp(a, 7)
    a(f"""
    v_cmp_gt_u32 vcc, 896, v0
    s_and_saveexec_b64 s[64:65], vcc
    s_cbranch_execz L_sv_h2_end
    v_cmp_le_u32 vcc, 448, v0
    s_nop 1
    v_cndmask_b32 v2, 0, 1, vcc
    v_mul_u32_u24 v3, 448, v2
    v_sub_u32 v3, v0, v3              ; col
    v_mul_u32_u24 v4, {8*448}, v2
    v_add_u32 v4, v4, v3
    v_lshlrev_b32 v4, 4, v4
    v_add_u32 v8, {G_ATT}, v4
    v_mul_u32_u24 v5, 896, v2
    v_add_u32 v5, v5, v3
    v_lshlrev_b32 v5, 2, v5
    """)
    for j in range(1, 8):
        a(f"v_add_u32 v{8+j}, 7168, v{8+j-1}")
    poll_masked(a, "h2", [(32+4*j, 8+j, 0) for j in range(8)], tmp=(2,3))
    sstamp(a, 3)
    for j in range(1, 8):
        a(f"v_pk_add_f32 v[32:33], v[32:33], v[{32+4*j}:{33+4*j}]")
    a(f"""
    ds_write_b32 v5, v32 offset:{L_ATTP}
    ds_write_b32 v5, v33 offset:{L_ATTP+1792}
L_sv_h2_end:
    s_mov_b64 exec, s[64:65]
    s_waitcnt lgkmcnt(0)
    s_barrier
    """)
    if os.environ.get("SUF2"): sstamp(a, 5)
    a(f"""
    s_cmp_ge_u32 s60, 2
    s_cbranch_scc1 L_sv_ln2_skip
    s_mul_i32 s61, s60, 1792
    v_lshl_add_u32 v4, v1, 2, s61
    """)
    for i in range(7):
        a(f"ds_read_b32 v{32+i}, v4 offset:{L_ATTP+i*256}")
        a(f"ds_read_b32 v{40+i}, v4 offset:{L_ATTP+3584+i*256}")
        a(f"ds_read_b32 v{48+i}, v4 offset:{L_X1+i*256}")
        a(f"ds_read_b32 v{8+i}, v4 offset:{L_MODN+i*256}")
        a(f"ds_read_b32 v{15+i}, v4 offset:{L_MODN+3584+i*256}")
        a(f"ds_read_b32 v{22+i}, v4 offset:{L_MODN+7168+i*256}")
    a("s_waitcnt lgkmcnt(0)")
    for i in range(7):
        a(f"v_add_f32 v{32+i}, v{32+i}, v{40+i}")
        rnd_bf16(a, 32+i, 5)
        a(f"v_mul_f32 v{32+i}, v{32+i}, v{8+i}")
        rnd_bf16(a, 32+i, 5)
        a(f"v_add_f32 v{48+i}, v{48+i}, v{32+i}")
        rnd_bf16(a, 48+i, 5)
        a(f"ds_write_b32 v4, v{48+i} offset:{L_X1+i*256}")
    if os.environ.get("SUF2"): sstamp(a, 6)
    ln_stats(a, 48, 56)
    if os.environ.get("SUF2"): sstamp(a, 7)
    a(f"""
    s_mul_i32 s61, s60, 896
    v_lshl_add_u32 v4, v1, 1, s61
    """)
    for i in range(7):
        ln_norm(a, 48+i, 32, 56, 34)
        a(f"v_add_f32 v{22+i}, 1.0, v{22+i}")
        rnd_bf16(a, 22+i, 34)
        a(f"v_mul_f32 v32, v32, v{22+i}")
        rnd_bf16(a, 32, 34)
        a(f"v_add_f32 v32, v32, v{15+i}")
        a(f"v_cvt_pk_bf16_f32 v32, v32, v32")
        a(f"ds_write_b16 v4, v32 offset:{L_HB+i*128}")
    a(f"""
L_sv_ln2_skip:
    s_waitcnt lgkmcnt(0)
    s_barrier
    """)
    stamp(a, 8)
    a(f"""
    v_and_b32 v2, 1, v0
    v_mul_u32_u24 v2, 896, v2
    v_bfe_u32 v3, v0, 4, 2
    v_lshl_add_u32 v2, v3, 4, v2
    s_lshr_b32 s61, s60, 3
    s_mul_i32 s61, s61, 448
    v_add_u32 v2, s61, v2
    """)
    for j in range(7):
        a(f"ds_read_b128 {vr(32+4*j,4)}, v2 offset:{L_HB+j*64}")
    zero(a, 8, 4)
    a("s_nop 1")
    for j in range(7):
        a(f"s_waitcnt lgkmcnt({6-j})")
        a(f"v_mfma_f32_16x16x32_bf16 v[8:11], {vr(32+4*j,4)}, {vr(64+4*j,4)}, v[8:11]")
    a(f"""
    s_lshl_b32 s61, s60, 7
    v_lshl_add_u32 v2, v1, 2, s61
    v_cmp_gt_u32 vcc, 16, v1
    s_and_saveexec_b64 s[64:65], vcc
    s_nop 5
    ds_write_b32 v2, v8 offset:{L_GU}
    ds_write_b32 v2, v9 offset:{L_GU+64}
    s_mov_b64 exec, s[64:65]
    s_waitcnt lgkmcnt(0)
    s_barrier
    """)
    if not os.environ.get("SUF2"): sstamp(a, 5)
    a(f"""
    v_cmp_gt_u32 vcc, 128, v0
    s_and_saveexec_b64 s[64:65], vcc
    s_cbranch_execz L_sv_act_end
    v_bfe_u32 v2, v0, 4, 2
    v_lshlrev_b32 v2, 5, v2
    v_lshrrev_b32 v3, 6, v0
    v_lshl_add_u32 v2, v3, 4, v2
    v_and_b32 v4, 15, v0
    v_add_u32 v2, v2, v4
    v_lshlrev_b32 v2, 2, v2
    ds_read_b32 v32, v2 offset:{L_GU}
    ds_read_b32 v33, v2 offset:{L_GU+8*128}
    ds_read_b32 v64, v2 offset:{L_GU+4*128}
    ds_read_b32 v65, v2 offset:{L_GU+12*128}
    s_waitcnt lgkmcnt(0)
    v_add_f32 v32, v32, v33
    v_add_f32 v64, v64, v65
    """)
    g = 32; u = 64
    rnd_bf16(a, g, 9)
    rnd_bf16(a, u, 9)
    a(f"""
    v_mul_f32 v9, v{g}, v{g}
    v_mul_f32 v9, v9, v{g}
    v_mov_b32 v10, 0x3d372713
    v_fma_f32 v9, v9, v10, v{g}
    v_mul_f32 v9, 0x40135761, v9
    v_exp_f32 v9, v9
    s_nop 0
    v_add_f32 v9, 1.0, v9
    v_rcp_f32 v9, v9
    s_nop 0
    v_fma_f32 v9, v9, -2.0, 1.0
    v_add_f32 v9, 1.0, v9
    v_mul_f32 v9, 0.5, v9
    v_mul_f32 v9, v9, v{g}
    """)
    rnd_bf16(a, 9, 10)
    a(f"""
    v_mul_f32 v{g}, v9, v{u}
    v_cvt_pk_bf16_f32 v{g}, v{g}, v{g}
    v_lshlrev_b32 v2, 1, v0
    ds_write_b16 v2, v{g} offset:{L_CB}
L_sv_act_end:
    s_mov_b64 exec, s[64:65]
    s_waitcnt lgkmcnt(0)
    s_barrier
    """)
    if not os.environ.get("SUF2"): sstamp(a, 6)
    a(f"""
    v_and_b32 v2, 1, v0
    v_lshlrev_b32 v2, 7, v2
    v_bfe_u32 v3, v0, 4, 2
    v_lshl_add_u32 v2, v3, 4, v2
    ds_read_b128 v[32:35], v2 offset:{L_CB}
    ds_read_b128 v[36:39], v2 offset:{L_CB+64}
    """)
    zero(a, 8, 8)
    a(f"""
    s_nop 1
    s_waitcnt lgkmcnt(0)
    v_mfma_f32_16x16x32_bf16 v[8:11], v[32:35], v[112:115], v[8:11]
    v_mfma_f32_16x16x32_bf16 v[12:15], v[32:35], v[120:123], v[12:15]
    v_mfma_f32_16x16x32_bf16 v[8:11], v[36:39], v[116:119], v[8:11]
    v_mfma_f32_16x16x32_bf16 v[12:15], v[36:39], v[124:127], v[12:15]
    s_mul_i32 s61, s2, 448
    s_lshl_b32 s62, s60, 4
    s_add_u32 s61, s61, s62
    v_add_u32 v2, s61, v1
    v_lshlrev_b32 v2, 4, v2
    v_add_u32 v2, {G_DN}, v2
    v_cmp_gt_u32 vcc, 16, v1
    s_and_saveexec_b64 s[64:65], vcc
    s_nop 4
    v_mov_b32 v10, s80
    v_mov_b32 v11, s81
    v_mov_b32 v14, s80
    v_mov_b32 v15, s81
    global_store_dwordx4 v2, v[8:11], s[42:43] sc1
    s_cmp_ge_u32 s60, 12
    s_cbranch_scc1 L_sv_dn_not1
    v_add_u32 v2, 4096, v2
    global_store_dwordx4 v2, v[12:15], s[42:43] sc1
L_sv_dn_not1:
    s_mov_b64 exec, s[64:65]
    """)
    stamp(a, 9)
    a(f"""
    v_cmp_gt_u32 vcc, 448, v0
    s_and_saveexec_b64 s[64:65], vcc
    s_cbranch_execz L_sv_dnp_end
    v_lshrrev_b32 v2, 4, v0
    v_mul_u32_u24 v2, 448, v2
    v_and_b32 v3, 15, v0
    v_add_u32 v2, v2, v3
    s_lshl_b32 s61, s2, 4
    v_add_u32 v2, s61, v2
    v_lshlrev_b32 v2, 4, v2
    v_add_u32 v2, {G_DN}, v2
    """)
    poll(a, "dn", [(32, 2, 0)], tmp=(4,5), sleep=0)
    sstamp(a, 8)
    a(f"""
    v_lshlrev_b32 v4, 3, v0
    ds_write_b64 v4, v[32:33] offset:{L_FIN}
L_sv_dnp_end:
    s_mov_b64 exec, s[64:65]
    s_waitcnt lgkmcnt(0)
    s_barrier
    v_cmp_gt_u32 vcc, 32, v0
    s_and_saveexec_b64 s[64:65], vcc
    s_cbranch_execz L_sv_dn_end
    v_and_b32 v5, 15, v0
    v_lshlrev_b32 v4, 3, v5
    v_lshrrev_b32 v6, 4, v0
    v_lshl_add_u32 v4, v6, 2, v4
    """)
    for s_ in range(28):
        a(f"ds_read_b32 v{32+s_}, v4 offset:{L_FIN+s_*128}")
    a(f"""
    s_lshl_b32 s61, s2, 4
    v_add_u32 v5, s61, v5
    v_mul_u32_u24 v6, 448, v6
    v_add_u32 v5, v5, v6
    v_lshlrev_b32 v6, 2, v5
    v_add_u32 v7, {L_MODN+10752}, v6
    ds_read_b32 v30, v6 offset:{L_X1}
    ds_read_b32 v31, v7
    s_waitcnt lgkmcnt(0)
    """)
    for s_ in range(1, 28):
        a(f"v_add_f32 v32, v32, v{32+s_}")
    rnd_bf16(a, 32, 9)
    a("v_mul_f32 v32, v32, v31")
    rnd_bf16(a, 32, 9)
    a("""
    v_add_f32 v32, v32, v30
    v_cvt_pk_bf16_f32 v32, v32, v32
    v_lshlrev_b32 v5, 1, v5
    global_store_short v5, v32, s[38:39]
L_sv_dn_end:
    s_mov_b64 exec, s[64:65]
L_sv_exit:
    """)
    sstamp(a, 9)
    stamp_store(a, 10)
    a("s_endpgm")

def main(outpath):
    hdr = open("cdna_kernels/" + NAME + ".s.ref").read().split("\n")
    out = []
    for l in hdr:
        if l.startswith("; Override") or l.startswith("; grid=") or l.startswith("; @launch") or l.startswith(".amdgcn"):
            break
        out.append(l)
    out.append(f"; @launch grid=(256,1,1) block=(1024,1,1) lds={LDS_TOTAL}")
    out.append('.amdgcn_target "amdgcn-amd-amdhsa--gfx950"')
    out.append(".text")
    k = NAME + "_kernel"
    a = Asm()
    a.svc = False
    a("""
    s_cmp_ge_u32 s2, 256
    s_cbranch_scc1 L_exit
    s_load_dwordx16 s[16:31], s[0:1], 0
    s_load_dwordx8 s[32:39], s[0:1], 64
    s_load_dwordx4 s[40:43], s[0:1], 96
    """)
    stamp(a, 0)
    a("""
    s_cmp_ge_u32 s2, 32
    s_cbranch_scc1 L_stream
    """)
    a.svc = True
    service(a)
    a.svc = False
    stream(a)
    a("L_exit:\ns_endpgm")
    out.append(f".globl {k}\n.p2align 8\n.type {k},@function\n{k}:\n" + a.text())
    out.append('.section .rodata,"a"')
    out.append(f""".p2align 6
.amdhsa_kernel {k}
  .amdhsa_next_free_vgpr 128
  .amdhsa_next_free_sgpr 102
  .amdhsa_accum_offset 128
  .amdhsa_group_segment_fixed_size 0
  .amdhsa_kernarg_size 112
  .amdhsa_user_sgpr_count 2
  .amdhsa_user_sgpr_kernarg_segment_ptr 1
  .amdhsa_system_sgpr_workgroup_id_x 1
.end_amdhsa_kernel""")
    open(outpath, "w").write("\n".join(out) + "\n")

if __name__ == "__main__":
    main(sys.argv[1] if len(sys.argv) > 1 else "cdna_kernels/" + NAME + ".s")
```
